```python
import torch

def _softmax(x, axis=-1):
    return torch.softmax(x, dim=axis)
def _gelu(x):
    return torch.nn.functional.gelu(x, approximate="tanh")
def _silu(x):
    return torch.nn.functional.silu(x)
def _sigmoid(x):
    return torch.sigmoid(x)
def _layernorm(x, axis=-1, eps=1e-5):
    m = x.mean(dim=axis, keepdim=True)
    v = x.var(dim=axis, keepdim=True, unbiased=False)
    return (x - m) / torch.sqrt(v + eps)
def _scatter_add(tgt, idx, src, axis=0):
    return tgt.clone().index_add_(axis, idx, src)
def _segment_sum(src, seg, n):
    out = torch.zeros((n,) + src.shape[1:], dtype=src.dtype)
    return out.index_add_(0, seg, src)
def _pad(x, pw):
    flat = tuple(v for pair in reversed(pw) for v in pair)
    return torch.nn.functional.pad(x, flat)

kernel_name = 'standalone__mha_softmax__near_ridge'

def setup_inputs():

    _w = (lambda a: (lambda t: t.to(torch.bfloat16) if t.is_floating_point() else t)(torch.as_tensor(a)))
    B, H, Sq, Sk, D = 32, 32, 384, 384, 192
    return {
        "q": _w((lambda *s: torch.randn(*s, dtype=torch.bfloat16) * 0.8)(B, H, Sq, D)),
        "k": _w((lambda *s: torch.randn(*s, dtype=torch.bfloat16) * 0.8)(B, H, Sk, D)),
        "v": _w((lambda *s: torch.randn(*s, dtype=torch.bfloat16) * 0.05)(B, H, Sk, D)),
    }

def reference(q, k, v):
    scale = q.shape[-1] ** -0.5
    scores = torch.einsum("bhqd,bhkd->bhqk", q, k) * scale
    p = _softmax(scores, axis=-1)
    return torch.einsum("bhqk,bhkd->bhqd", p, v)
```

```python
import sys, struct, math
OPT = dict(compute=1, nt_q=1, nt_o=0, la=7, prio=0, qpf=1, T=8.0, nitems=6, dmapos=1)
for a in sys.argv[2:]:
    k, v = a.split('='); OPT[k] = float(v) if '.' in v else int(v)
NAME = "standalone__mha_softmax__near_ridge"
NB = 32*32*384*192*2
TILE = 12288
def f2u(x): return struct.unpack('<I', struct.pack('<f', x))[0]
C = 192**-0.5 * math.log2(math.e)
O = 0; Q = 96; S = [144, 160]; F = 176; NF = 8
KA = 208; VA = 212; DK = 214; DV = 217; QO = 220; QPF = 221; JUNK = 222
MC = 224; THR = 225; L0 = 226; L1 = 227; AL = 228; T0 = 230; T1 = 231; T2 = 232; T3 = 233; MR = 234
SQ, SK, SV, SO = 8, 12, 16, 20
sH, sHn, sQo, sQn, sIt, sC, sW, sT, sFlag, sSlot, sX, sTc = 24, 25, 26, 27, 28, 29, 30, 31, 32, 33, 34, 35
VSLOT = [0, TILE, 2*TILE]; KSLOT = [3*TILE, 4*TILE, 5*TILE]
out = []
def e(s): out.append("    " + s)
def lab(s): out.append(s + ":")
def vr(b, n): return "v[%d:%d]" % (b, b+n-1)
class Cnt:
    def __init__(s): s.n = 0; s.done = 0
    def issue(s): s.n += 1; return s.n
lg = Cnt(); vm = Cnt()
def wait_lg(i):
    if i <= lg.done: return
    n = lg.n - i
    assert n <= 15, n
    e("s_waitcnt lgkmcnt(%d)" % n); lg.done = i
def wait_vm(i):
    if i <= vm.done: return
    n = vm.n - i
    assert n <= 63, n
    e("s_waitcnt vmcnt(%d)" % n); vm.done = i
phases = [('K', 0)]
for j in range(11): phases += [('K', j+1), ('V', j)]
phases += [('V', 11)]
assert len(phases) == 24
def frag_reads(p, k, buf):
    kind, j = phases[p % 24]
    b = F + 4*buf
    if kind == 'K':
        e("ds_read_b128 %s, v%d offset:%d" % (vr(b, 4), KA + (k % 4), KSLOT[j % 3] + 128*(k//4)))
        return lg.issue()
    ks, dt = k // 6, k % 6
    for i2 in range(2):
        e("ds_read_b64_tr_b16 %s, v%d offset:%d" % (vr(b+2*i2, 2), VA + (dt & 1), VSLOT[j % 3] + (16*ks+8*i2)*384 + 64*dt))
        r = lg.issue()
    return r
def dma(kind, j):
    base = sH if j < 12 else sHn
    jj = j % 12
    slot = (KSLOT if kind == 'K' else VSLOT)[jj % 3]
    srd = SK if kind == 'K' else SV
    va = DK if kind == 'K' else DV
    e("s_add_u32 m0, s%d, %d" % (sW, slot))
    e("s_add_u32 s%d, s%d, %d" % (sT, base, jj*TILE))
    for ii in range(3):
        e("buffer_load_dwordx4 v%d, s[%d:%d], s%d offen offset:%d lds" % (va+ii, srd, srd+3, sT, 1024*ii))
        r = vm.issue()
    return r
def mfma(p, k, buf):
    kind, j = phases[p % 24]
    b = F + 4*buf
    if kind == 'K':
        s = S[j & 1]
        e("v_mfma_f32_32x32x16_bf16 %s, %s, %s, %s" % (vr(s, 16), vr(b, 4), vr(Q+4*k, 4), "0" if k == 0 else vr(s, 16)))
    else:
        ks, dt = k // 6, k % 6
        o = O + 16*dt
        e("v_mfma_f32_32x32x16_bf16 %s, %s, %s, %s" % (vr(o, 16), vr(b, 4), vr(S[j & 1]+4*ks, 4), "0" if (j == 0 and ks == 0) else vr(o, 16)))
def maxtree(s):
    ops = [(4, "v_max3_f32 v%d, v%d, v%d, v%d" % (T0, s, s+1, s+2)), (4, "v_max3_f32 v%d, v%d, v%d, v%d" % (T1, s+3, s+4, s+5))]
    ops += [(4, "v_max3_f32 v%d, v%d, v%d, v%d" % (T0, T0, s+6, s+7)), (4, "v_max3_f32 v%d, v%d, v%d, v%d" % (T1, T1, s+8, s+9))]
    ops += [(4, "v_max3_f32 v%d, v%d, v%d, v%d" % (T0, T0, s+10, s+11)), (4, "v_max3_f32 v%d, v%d, v%d, v%d" % (T1, T1, s+12, s+13))]
    ops += [(4, "v_max3_f32 v%d, v%d, v%d, v%d" % (T0, T0, s+14, s+15)), (4, "v_max_f32 v%d, v%d, v%d" % (T0, T0, T1))]
    return ops
def newmax_first():
    return [(4, "v_mov_b32 v%d, v%d" % (T1, T0)), (4, "v_mov_b32 v%d, 0" % L0), (4, "v_mov_b32 v%d, 0" % L1),
            (4, "v_permlane32_swap_b32 v%d, v%d" % (T0, T1)), (4, "s_nop 1"),
            (4, "v_max_f32 v%d, v%d, v%d" % (MR, T0, T1)),
            (4, "v_mul_f32 v%d, s%d, v%d" % (MC, sC, MR)), (4, "v_add_f32 v%d, s%d, v%d" % (THR, sTc, MR))]
slow = []
def check(j):
    def f():
        e("v_cmp_gt_f32 vcc, v%d, v%d" % (T0, THR))
        e("s_cbranch_vccnz L_slow%d" % j)
        lab("L_back%d" % j)
    blk = ["L_slow%d:" % j,
           "v_mov_b32 v%d, v%d" % (T1, T0), "s_nop 1", "v_permlane32_swap_b32 v%d, v%d" % (T0, T1), "s_nop 1",
           "v_max3_f32 v%d, v%d, v%d, v%d" % (T0, T0, T1, MR),
           "v_sub_f32 v%d, v%d, v%d" % (T1, MR, T0), "v_mul_f32 v%d, s%d, v%d" % (T1, sC, T1),
           "v_exp_f32 v%d, v%d" % (AL, T1), "v_mov_b32 v%d, v%d" % (MR, T0),
           "v_mul_f32 v%d, s%d, v%d" % (MC, sC, MR), "v_add_f32 v%d, s%d, v%d" % (THR, sTc, MR),
           "v_mul_f32 v%d, v%d, v%d" % (L0, L0, AL), "v_mul_f32 v%d, v%d, v%d" % (L1, L1, AL),
           "s_mov_b32 s%d, 1" % sFlag, "s_branch L_back%d" % j]
    slow.extend(blk)
    return [(8, f)]
def rescale_point(j):
    e("s_cmp_lg_u32 s%d, 0" % sFlag)
    e("s_cbranch_scc1 L_resc%d" % j)
    lab("L_rback%d" % j)
    blk = ["L_resc%d:" % j, "s_nop 15", "s_mov_b32 s%d, 0" % sFlag]
    blk += ["v_mul_f32 v%d, v%d, v%d" % (O+i, O+i, AL) for i in range(96)]
    blk += ["s_nop 1", "s_branch L_rback%d" % j]
    slow.extend(blk)
def expops(s, lo, hi):
    ops = []
    n = hi - lo
    fma = lambda i: (4, "v_fma_f32 v%d, v%d, s%d, -v%d" % (s+i, s+i, sC, MC))
    ex = lambda i: (8, "v_exp_f32 v%d, v%d" % (s+i, s+i))
    ad = lambda i: (4, "v_add_f32 v%d, v%d, v%d" % ((L0, L1)[i & 1], (L0, L1)[i & 1], s+i))
    cv = lambda i: (4, "v_cvt_pk_bf16_f32 v%d, v%d, v%d" % (s+i//2, s+i, s+i+1))
    for t in range(lo, hi+3):
        if t < hi: ops.append(fma(t))
        if lo <= t-1 < hi: ops.append(ex(t-1))
        if lo <= t-3 < hi:
            ops.append(ad(t-3))
            if (t-3) & 1: ops.append(cv(t-4))
    return ops
def emit_op(op):
    c, t = op
    if callable(t): t()
    else: e(t)

e("s_cmp_ge_u32 s2, 512"); e("s_cbranch_scc1 L_end")
e("s_load_dwordx4 s[4:7], s[0:1], 0"); e("s_load_dwordx4 s[36:39], s[0:1], 16")
e("v_and_b32 v1, 63, v0")
e("v_lshrrev_b32 v2, 6, v0")
e("s_nop 0"); e("v_readfirstlane_b32 s40, v2")
e("v_and_b32 v3, 31, v1")
e("v_lshrrev_b32 v4, 5, v1")
e("v_mul_u32_u24 v5, 384, v3"); e("v_bfe_u32 v6, v3, 1, 3")
for t in range(4):
    e("v_or_b32 v7, %d, v4" % (2*t)); e("v_xor_b32 v7, v7, v6"); e("v_lshl_add_u32 v%d, v7, 4, v5" % (KA+t))
e("v_bfe_u32 v6, v1, 2, 2"); e("v_lshl_add_u32 v7, v4, 2, v6"); e("v_mul_u32_u24 v7, 384, v7")
e("v_bfe_u32 v8, v1, 4, 1"); e("v_lshl_add_u32 v7, v8, 5, v7")
e("v_and_b32 v8, 3, v1"); e("v_lshl_add_u32 v7, v8, 3, v7")
e("v_lshrrev_b32 v8, 1, v6"); e("v_lshlrev_b32 v8, 6, v8")
e("v_add_u32 v%d, v7, v8" % VA); e("v_sub_u32 v%d, v7, v8" % (VA+1))
e("v_mul_u32_u24 v9, 3072, v2")
for ii in range(3):
    e("v_add_u32 v6, %d, v1" % (64*ii)); e("v_mul_u32_u24 v6, 2731, v6"); e("v_lshrrev_b32 v6, 16, v6")
    e("v_lshl_add_u32 v6, v2, 3, v6")
    e("v_bfe_u32 v7, v6, 1, 3"); e("v_xor_b32 v7, v7, v1"); e("v_lshl_add_u32 v%d, v7, 4, v9" % (DK+ii))
    e("v_bfe_u32 v7, v6, 1, 1"); e("v_lshlrev_b32 v7, 2, v7"); e("v_xor_b32 v7, v7, v1"); e("v_lshl_add_u32 v%d, v7, 4, v9" % (DV+ii))
e("v_mul_u32_u24 v9, 12288, v2"); e("v_add_u32 v6, v9, v5"); e("v_lshl_add_u32 v%d, v4, 4, v6" % QO)
e("v_lshl_add_u32 v%d, v1, 7, v9" % QPF); e("v_add_u32 v%d, 124, v%d" % (QPF, QPF))
e("s_waitcnt lgkmcnt(0)")
for (d, src) in ((SQ, 4), (SK, 6), (SV, 36), (SO, 38)):
    e("s_mov_b32 s%d, s%d" % (d, src)); e("s_and_b32 s%d, s%d, 0xffff" % (d+1, src+1))
    e("s_mov_b32 s%d, %d" % (d+2, NB)); e("s_mov_b32 s%d, 0x00020000" % (d+3))
e("s_mul_i32 s%d, s40, 3072" % sW)
e("s_mov_b32 s%d, 0x%x" % (sC, f2u(C))); e("s_mov_b32 s%d, 0x%x" % (sTc, f2u(OPT['T']/C)))
e("s_and_b32 s%d, s2, 7" % sX); e("s_lshr_b32 s%d, s2, 3" % sSlot)
e("s_mov_b32 s%d, 0" % sFlag); e("s_mov_b32 s%d, 0" % sIt)
def item_offsets(h, q):
    e("s_mul_i32 s41, s%d, 21846" % sSlot); e("s_lshr_b32 s41, s41, 16")
    e("s_mul_i32 s42, s41, 3"); e("s_sub_u32 s42, s%d, s42" % sSlot)
    e("s_lshl_b32 s41, s41, 3"); e("s_add_u32 s41, s41, s%d" % sX)
    e("s_mul_i32 s%d, s41, 147456" % h)
    e("s_mul_i32 s42, s42, 49152"); e("s_add_u32 s%d, s%d, s42" % (q, h))
    e("s_cmp_ge_u32 s%d, %d" % (sSlot, 64*OPT['nitems']))
    e("s_cselect_b32 s%d, 0x10000000, s%d" % (h, h)); e("s_cselect_b32 s%d, 0x10000000, s%d" % (q, q))
    e("s_add_u32 s%d, s%d, 64" % (sSlot, sSlot))
item_offsets(sHn, sQn)
ntq = " nt" if OPT['nt_q'] else ""
nto = " nt" if OPT['nt_o'] else ""
def qloads():
    for t in range(12):
        e("buffer_load_dwordx4 %s, v%d, s[%d:%d], s%d offen offset:%d%s" % (vr(Q+4*t, 4), QO, SQ, SQ+3, sQn, 32*t, ntq)); r = vm.issue()
    return r
tid = {}
tid[('K', 0)] = dma('K', 12); tid[('K', 1)] = dma('K', 13); tid[('V', 0)] = dma('V', 12)
qid = qloads()
tid[('K', 2)] = dma('K', 14); tid[('V', 1)] = dma('V', 13)
e("s_mov_b32 s41, 0x10000000")
for i in range(12):
    e("buffer_load_dword v%d, v%d, s[%d:%d], s41 offen" % (JUNK, QO, SQ, SQ+3)); vm.issue()
wait_vm(tid[('K', 0)])
e("s_barrier")
LA = OPT['la']
pend = {}
for k in range(LA): pend[k] = frag_reads(0, k, k % NF)
e("s_nop 0")
out.append(".p2align 3")
lab("L_item")
e("s_mov_b32 s%d, s%d" % (sH, sHn)); e("s_mov_b32 s%d, s%d" % (sQo, sQn))
item_offsets(sHn, sQn)
e("s_waitcnt lgkmcnt(0)"); lg.done = lg.n
wait_vm(qid)
g = 0
newtid = {}
for p in range(24):
    kind, j = phases[p]
    nk, nj = phases[(p+1) % 24]
    key = (nk, nj) if p < 23 else ('Kn', 0)
    t = tid.get(key) if key in tid else newtid[(nk, nj)]
    wait_vm(t)
    e("s_barrier")
    pk, pj = phases[(p-1) % 24]
    def do_dma():
        if p == 0: tid[('V', 2)] = dma('V', 2)
        else:
            r = dma(pk, pj+3)
            if pj+3 < 12: tid[(pk, pj+3)] = r
            else: newtid[(pk, pj+3-12)] = r
    ops = []; start = 0
    if kind == 'K':
        if j == 1: ops = maxtree(S[0]) + newmax_first() + expops(S[0], 0, 16); start = 2
        elif j >= 2: ops = expops(S[(j-1) & 1], 8, 16)
    else:
        if j <= 9: ops = maxtree(S[(j+1) & 1]) + check(j+1) + expops(S[(j+1) & 1], 0, 8); start = 2
        elif j == 10: ops = maxtree(S[1]) + check(11) + expops(S[1], 0, 16); start = 2
    if not OPT['compute']: ops = []
    tot = sum(c for c, _ in ops); nslots = 12 - start; done = 0; oi = 0
    for k in range(12):
        if k == OPT['dmapos'] and OPT['compute']: do_dma()
        if OPT['compute']:
            wait_lg(pend[g])
            mfma(p, k, g % NF)
            nk2 = k + LA
            pend[g+LA] = frag_reads(p + nk2 // 12, nk2 % 12, (g+LA) % NF)
        g += 1
        if k >= start:
            target = tot * (k - start + 1) / nslots
            while oi < len(ops) and done + ops[oi][0]/2 <= target:
                emit_op(ops[oi]); done += ops[oi][0]; oi += 1
        elif k == 1 and start == 2:
            e("s_nop 3")
        if p == 2 and k == 6 and OPT['qpf']:
            e("buffer_load_dword v%d, v%d, s[%d:%d], s%d offen" % (JUNK, QPF, SQ, SQ+3, sQn)); vm.issue()
            e("buffer_load_dword v%d, v%d, s[%d:%d], s%d offen offset:4092" % (JUNK, QPF, SQ, SQ+3, sQn)); vm.issue()
    if not OPT['compute']: do_dma()
    while oi < len(ops): emit_op(ops[oi]); oi += 1
    if kind == 'K' and j == 11: newqid = qloads()
    if kind == 'V' and j <= 10 and OPT['compute']: rescale_point(j+1)
e("v_add_f32 v%d, v%d, v%d" % (L0, L0, L1)); e("v_mov_b32 v%d, v%d" % (L1, L0)); e("s_nop 1")
e("v_permlane32_swap_b32 v%d, v%d" % (L0, L1)); e("s_nop 1")
e("v_add_f32 v%d, v%d, v%d" % (L0, L0, L1)); e("v_rcp_f32 v%d, v%d" % (T0, L0)); e("s_nop 7")
tb = 0
for dt in range(6):
    for gp in range(2):
        o = O + 16*dt + 8*gp
        d = S[0] + 4*(tb % 8); tb += 1
        for i in range(4): e("v_pk_mul_f32 %s, %s, %s op_sel_hi:[1,0]" % (vr(o+2*i, 2), vr(o+2*i, 2), vr(T0, 2)))
        for i in range(4): e("v_cvt_pk_bf16_f32 v%d, v%d, v%d" % (d+i, o+2*i, o+2*i+1))
        e("s_nop 1")
        e("v_permlane32_swap_b32 v%d, v%d" % (d, d+2)); e("v_permlane32_swap_b32 v%d, v%d" % (d+1, d+3))
        e("buffer_store_dwordx4 %s, v%d, s[%d:%d], s%d offen offset:%d%s" % (vr(d, 4), QO, SO, SO+3, sQo, 64*dt+32*gp, nto)); vm.issue()
assert vm.n - newqid == 6 + 12, vm.n - newqid
for kk, dist in ((('K', 1), None), (('V', 0), None), (('K', 2), 15), (('V', 1), 12)):
    if dist is not None: assert vm.n - newtid[kk] == dist, (kk, vm.n - newtid[kk])
e("s_add_u32 s%d, s%d, 1" % (sIt, sIt)); e("s_cmp_lt_u32 s%d, %d" % (sIt, OPT['nitems'])); e("s_cbranch_scc1 L_item")
lab("L_end")
e("s_endpgm")
for s in slow: (out.append(s) if s.endswith(':') else e(s))
hdr = open('cdna_kernels/%s.s.ref' % NAME).read().split('\n')
hdr = [l for l in hdr if l.startswith(';') and '@launch' not in l]
txt = '\n'.join(hdr) + "\n; @launch grid=(512,1,1) block=(256,1,1) lds=73728\n"
txt += '.amdgcn_target "amdgcn-amd-amdhsa--gfx950"\n.text\n.globl %s_kernel\n.p2align 8\n.type %s_kernel,@function\n%s_kernel:\n' % (NAME, NAME, NAME)
txt += '\n'.join(out) + "\n"
txt += """.section .rodata,"a"
.p2align 6
.amdhsa_kernel %s_kernel
  .amdhsa_next_free_vgpr 240
  .amdhsa_next_free_sgpr 48
  .amdhsa_accum_offset 240
  .amdhsa_group_segment_fixed_size 0
  .amdhsa_kernarg_size 48
  .amdhsa_user_sgpr_count 2
  .amdhsa_user_sgpr_kernarg_segment_ptr 1
  .amdhsa_system_sgpr_workgroup_id_x 1
.end_amdhsa_kernel
""" % NAME
open(sys.argv[1], 'w').write(txt)
```

```python
import sys, struct, math
OPT = dict(compute=1, T=8.0, nheads=4, dmapos=1, kvp=1, qp=1, op=0, la1=3, la2=3, prio=0, st=1, p1=1, p2=1, nomem=0, ql=1, stamp=0, sched=5, defer=1, qd=2, qd0=27, fl=1, pk=0, tl=0, ones=1, w2=1, ns=1, sp3=0, m3=0, qv=0, sh=1, oc=1)
for a in sys.argv[2:]:
    k, v = a.split('='); OPT[k] = float(v) if '.' in v else int(v)
POL = ['', ' nt', ' sc1', ' sc0 sc1', ' sc1 nt', ' sc0 sc1 nt']
NAME = "standalone__mha_softmax__near_ridge"
NB = 32*32*384*192*2
ST = 24576
OOB = 0x10000000
def f2u(x): return struct.unpack('<I', struct.pack('<f', x))[0]
C = 192**-0.5 * math.log2(math.e)
X = 144; Q = 156; O = 156; VA = 204; DK = 208; QO = 211; OO = 212; LN = 213; TT = 214
DK1 = 132; OO1 = 135; OD = 96; OD2 = 120
FB = 228; MC = 245; L = 244; KA = 250; DV = 252; T0 = 253; T1 = 254; T2 = 255
POOL1 = [FB+4*i for i in range(4)]
POOL2 = POOL1
SQ, SK, SV, SO = 8, 12, 16, 20
sH, sHn, sO, sIt, sC, sW, sT, sWv, sTh, sT2, sHd, sOp, sTq, sW2 = 24, 25, 26, 28, 29, 30, 31, 32, 33, 34, 35, 27, 42, 43
sC2 = 48
M3 = OPT['m3']
QS = 3 if M3 else 1 + OPT['ns']
QO1 = 136
SP = ({2, 3} if OPT['sp3'] else {2}) if OPT['ns'] else {1}
if M3: SP = SP | {1}
OPT_Q = {2: (1, 7), 3: (1, 5, 9)}[OPT['qd']]
out = []
def e(s): out.append("    " + s)
def lab(s): out.append(s + ":")
def vr(b, n): return "v[%d:%d]" % (b, b+n-1)
class Cnt:
    def __init__(s): s.n = 0; s.done = 0
    def issue(s): s.n += 1; return s.n
lg = Cnt(); vm = Cnt()
def wait_lg(i):
    if i <= lg.done: return
    n = lg.n - i; assert n <= 15, n
    e("s_waitcnt lgkmcnt(%d)" % n); lg.done = i
def wait_vm(i):
    if i <= vm.done: return
    n = vm.n - i; assert n <= 63, n
    e("s_waitcnt vmcnt(%d)" % n); vm.done = i
nst = [0]
def stamp():
    if OPT['stamp']:
        e("s_memtime s[%d:%d]" % (50+2*nst[0], 51+2*nst[0])); nst[0] += 1
ntl = [0]
def tline(idx_sgpr, add):
    if not OPT['tl']: return
    ntl[0] += 1; lb = "L_tl%d" % ntl[0]
    e("s_and_b32 s41, s2, 63"); e("s_or_b32 s41, s41, s40"); e("s_cmp_lg_u32 s41, 0"); e("s_cbranch_scc1 " + lb)
    e("s_memrealtime s[50:51]"); e("s_load_dwordx2 s[44:45], s[0:1], 32"); e("s_waitcnt lgkmcnt(0)"); e("s_mov_b32 s46, 256"); e("s_mov_b32 s47, 0x00020000")
    e("s_and_b32 s45, s45, 0xffff"); e("s_lshr_b32 s41, s2, 6"); e("s_lshl_b32 s41, s41, 3"); e("s_add_u32 s41, s41, s%d" % idx_sgpr); e("s_add_u32 s41, s41, %d" % add)
    e("s_lshl_b32 s41, s41, 2"); e("v_mov_b32 v%d, s41" % T1); e("v_mov_b32 v%d, s50" % T0)
    e("buffer_store_dword v%d, v%d, s[44:47], 0 offen" % (T0, T1)); e("s_waitcnt vmcnt(0)"); lab(lb)
def Sreg(j, kt, qt): return (12*j if kt == 0 else X) + 4*qt
def dma(t):
    slot = (t-6) % 3 if (M3 and 6 <= t < 12) else t % 6
    e("s_add_u32 m0, s%d, %d" % (sW, slot*ST))
    if 6 <= t < 12:
        i = t - 6
        for ii in range(3):
            e("s_add_u32 s%d, s%d, %d" % (sT, sH, (i % 2)*192*384 + (i//2)*128 + 2048*ii))
            e("buffer_load_dwordx4 v%d, s[%d:%d], s%d offen offset:%d%s lds" % (DV, SV, SV+3, sT, 1024*ii, POL[OPT['kvp']])); r = vm.issue()
    else:
        e("s_add_u32 s%d, s%d, %d" % (sT, sHn if t >= 12 else sH, (t % 12)*ST))
        for ii in range(3):
            e("buffer_load_dwordx4 v%d, s[%d:%d], s%d offen offset:%d%s lds" % ((DK if t >= 12 else DK1)+ii, SK, SK+3, sT, 1024*ii, POL[OPT['kvp']])); r = vm.issue()
    return r
def kread(n, b):
    u, t = divmod(n, 6); j, kt = divmod(u, 2); s = j // 2
    if n % 48 == 0 and n > 0:
        for i in range(2): e("v_add_u32 v%d, 0xc000, v%d" % (KA+i, KA+i))
    e("ds_read_b128 %s, v%d offset:%d" % (vr(b, 4), KA+(t & 1), (s % 2)*ST + (32*(j % 2)+16*kt)*384 + 128*(t >> 1)))
    r = lg.issue()
    if n == 143:
        for i in range(2): e("v_subrev_u32 v%d, 0x18000, v%d" % (KA+i, KA+i))
    return r
def vread(n, b):
    pj, dt = divmod(n, 4); ps, j = divmod(pj, 12); s = ps*2 + j // 6
    if M3:
        if n % 24 == 0 and s in (2, 3, 5):
            for i in range(4): e("%s v%d, 0xc000, v%d" % ("v_subrev_u32" if s == 3 else "v_add_u32", VA+i, VA+i))
        s = s % 3
    elif n % 48 == 0 and n > 0:
        for i in range(4): e("v_add_u32 v%d, 0xc000, v%d" % (VA+i, VA+i))
    for i2 in range(2):
        e("ds_read_b64_tr_b16 %s, v%d offset:%d" % (vr(b+2*i2, 2), VA+dt, (s % 2)*ST + (32*(j % 6)+16*i2)*128))
        r = lg.issue()
    return r
MF = "v_mfma_f32_16x16x32_bf16 %s, %s, %s, %s"
def kmfma(n, b, qt):
    u, t = divmod(n, 6); j, kt = divmod(u, 2); s = Sreg(j, kt, qt)
    e(MF % (vr(s, 4), vr(b, 4), vr(Q+24*qt+4*t, 4), "0" if t == 0 else vr(s, 4)))
def vmfma(n, b, qt):
    pj, dt = divmod(n, 4); ps, j = divmod(pj, 12); o = O + 16*qt + 4*dt
    e(MF % (vr(o, 4), vr(b, 4), vr(12*j+4*qt, 4), "0" if j == 0 else vr(o, 4)))
slow = []
def xlane(op, a, b):
    r = []
    for sw in ("v_permlane16_swap_b32", "v_permlane32_swap_b32"):
        r += ["v_mov_b32 v%d, v%d" % (b, a), "s_nop 1", "%s v%d, v%d" % (sw, a, b), "s_nop 1", "%s v%d, v%d, v%d" % (op, a, a, b)]
    return r
def softmax(u):
    j, kt = divmod(u, 2)
    R = [Sreg(j, kt, qt) for qt in range(3)]
    ops = []
    if u == 0:
        for qt in range(3):
            r = R[qt]
            ops += [(4, "v_max3_f32 v%d, v%d, v%d, v%d" % (T0, r, r+1, r+2)), (4, "v_max_f32 v%d, v%d, v%d" % (T0, T0, r+3))]
            ops += [(4, s) for s in xlane("v_max_f32", T0, T1)]
            ops += [(4, "v_mul_f32 v%d, s%d, v%d" % (MC+2*qt, sC, T0)), (4, ("v_add_f32 v%d, s%d, v%d" % (MC+2*qt, sTh, MC+2*qt)) if OPT['oc'] else ("v_mov_b32 v%d, 0" % (L+2*qt)))]
    for qt in range(3):
        if OPT['pk']:
            for i in (0, 2): ops.append((4, "v_pk_fma_f32 %s, %s, s[%d:%d], %s op_sel:[0,0,1] op_sel_hi:[1,1,1] neg_lo:[0,0,1] neg_hi:[0,0,1]" % (vr(R[qt]+i, 2), vr(R[qt]+i, 2), sC2, sC2+1, vr(L+2*qt, 2))))
        else:
            for i in range(4): ops.append((4, "v_fma_f32 v%d, v%d, s%d, -v%d" % (R[qt]+i, R[qt]+i, sC, MC+2*qt)))
    if u > 0 and not OPT['oc']:
        a = [R[qt]+i for qt in range(3) for i in range(4)]
        ops += [(4, "v_max3_f32 v%d, v%d, v%d, v%d" % (T0, a[0], a[1], a[2])), (4, "v_max3_f32 v%d, v%d, v%d, v%d" % (T1, a[3], a[4], a[5])),
                (4, "v_max3_f32 v%d, v%d, v%d, v%d" % (T0, T0, a[6], a[7])), (4, "v_max3_f32 v%d, v%d, v%d, v%d" % (T1, T1, a[8], a[9])),
                (4, "v_max3_f32 v%d, v%d, v%d, v%d" % (T0, T0, a[10], a[11])), (4, "v_max_f32 v%d, v%d, v%d" % (T0, T0, T1))]
        def chk():
            e("v_cmp_lt_f32 vcc, s%d, v%d" % (sTh, T0)); e("s_cbranch_vccnz L_slow%d" % u); lab("L_back%d" % u)
        ops.append((8, chk))
        blk = ["L_slow%d:" % u]
        for qt in range(3):
            r = R[qt]
            blk += ["v_max3_f32 v%d, v%d, v%d, v%d" % (T0, r, r+1, r+2), "v_max3_f32 v%d, v%d, v%d, 0" % (T0, T0, r+3)]
            blk += xlane("v_max_f32", T0, T1)
            blk += ["v_add_f32 v%d, v%d, v%d" % (MC+2*qt, MC+2*qt, T0)]
            blk += ["v_sub_f32 v%d, v%d, v%d" % (r+i, r+i, T0) for i in range(4)]
            blk += ["v_exp_f32 v%d, -v%d" % (T0, T0), "s_nop 0", "v_mul_f32 v%d, v%d, v%d" % (L+2*qt, L+2*qt, T0)]
            regs = [12*jj+4*qt+i for jj in range(j) for i in range(4)] + ([12*j+4*qt, 12*j+4*qt+1] if kt else [])
            for p in regs:
                blk += ["v_lshlrev_b32 v%d, 16, v%d" % (T1, p), "v_and_b32 v%d, 0xffff0000, v%d" % (T2, p),
                        "v_mul_f32 v%d, v%d, v%d" % (T1, T1, T0), "v_mul_f32 v%d, v%d, v%d" % (T2, T2, T0),
                        "v_cvt_pk_bf16_f32 v%d, v%d, v%d" % (p, T1, T2)]
        blk += ["s_branch L_back%d" % u]
        slow.extend(blk)
    seq = [(qt, i) for qt in range(3) for i in range(4)]
    for n in range(12+2):
        if n < 12:
            qt, i = seq[n]; ops.append((8, "v_exp_f32 v%d, v%d" % (R[qt]+i, R[qt]+i)))
        if n >= 2:
            qt, i = seq[n-2]
            if not OPT['ones']: ops.append((4, "v_add_f32 v%d, v%d, v%d" % (L+2*qt, L+2*qt, R[qt]+i)))
            if i & 1: ops.append((4, "v_cvt_pk_bf16_f32 v%d, v%d, v%d" % (12*j+4*qt+2*kt+i//2, R[qt]+i-1, R[qt]+i)))
    if OPT['ones']: ops.insert(len(ops)-1, (4, "s_nop 0"))
    if OPT['oc'] and chk_on:
        idx = [i for i, o in enumerate(ops) if o[1].startswith("v_cvt_pk")]
        for qt in (2, 1, 0):
            pr = 12*j+4*qt+2*kt
            ops.insert(min(idx[2*qt+1]+2, len(ops)), (4, "v_or3_b32 v%d, v%d, v%d, %s" % (T2, pr, pr+1, "0" if (u == 0 and qt == 0) else "v%d" % T2)))
    return ops
chk_on = True
sMk = 44
def slowpath():
    global chk_on
    chk_on = False
    lab("L_slow")
    e("s_waitcnt vmcnt(0) lgkmcnt(0)"); e("s_mov_b64 s[%d:%d], -1" % (sMk, sMk+1)); e("s_nop 7"); e("s_nop 7")
    e("v_mbcnt_lo_u32_b32 v%d, -1, 0" % T0); e("v_mbcnt_hi_u32_b32 v%d, -1, v%d" % (T0, T0))
    e("v_lshrrev_b32 v%d, 4, v%d" % (T1, T0)); e("v_and_b32 v%d, 15, v%d" % (T0, T0)); e("v_mul_u32_u24 v%d, 384, v%d" % (T0, T0))
    e("v_lshl_add_u32 v%d, v%d, 4, v%d" % (T2, T1, T0))
    e("s_mul_i32 s%d, s%d, 6" % (sT, sW)); e("s_add_u32 s%d, s%d, s%d" % (sT, sT, sH))
    for qt in range(3):
        for t in range(6): e("buffer_load_dwordx4 %s, v%d, s[%d:%d], s%d offen offset:%d" % (vr(Q+24*qt+4*t, 4), T2, SQ, SQ+3, sT, 64*t))
        e("s_add_u32 s%d, s%d, 6144" % (sT, sT))
    def unit(R):
        for h in range(2):
            for t in range(3): e("buffer_load_dwordx4 %s, v%d, s[%d:%d], s%d offen offset:%d" % (vr(FB+4*t, 4), T2, SK, SK+3, sT, 64*(3*h+t)))
            e("s_waitcnt vmcnt(0)")
            for t in range(3):
                for qt in range(3): e(MF % (vr(R[qt], 4), vr(FB+4*t, 4), vr(Q+24*qt+4*(3*h+t), 4), "0" if 3*h+t == 0 else vr(R[qt], 4)))
            e("s_nop 7"); e("s_nop 7"); e("s_nop 7")
        e("s_add_u32 s%d, s%d, 6144" % (sT, sT))
    for qt in range(3): e("v_mov_b32 v%d, 0xff800000" % (MC+2*qt))
    e("s_mov_b32 s%d, s%d" % (sT, sH)); e("s_mov_b32 s%d, 0" % sT2)
    lab("L_slow_a")
    unit([X+4*qt for qt in range(3)])
    for qt in range(3):
        r = X+4*qt; m = MC+2*qt
        e("v_max3_f32 v%d, v%d, v%d, v%d" % (m, m, r, r+1)); e("v_max3_f32 v%d, v%d, v%d, v%d" % (m, m, r+2, r+3))
    e("s_add_u32 s%d, s%d, 1" % (sT2, sT2)); e("s_cmp_lt_u32 s%d, 24" % sT2); e("s_cbranch_scc1 L_slow_a")
    for qt in range(3):
        for x in xlane("v_max_f32", MC+2*qt, T1): e(x)
        e("v_mul_f32 v%d, s%d, v%d" % (MC+2*qt, sC, MC+2*qt))
    e("s_mov_b32 s%d, s%d" % (sT, sH))
    for u in range(24):
        unit([Sreg(u//2, u % 2, qt) for qt in range(3)])
        if u < 23:
            for op in softmax(u)[-31:]: emit_op(op)
    e("s_branch L_p2")
    chk_on = True
def emit_op(op):
    if callable(op[1]): op[1]()
    else: e(op[1])
def lane_consts():
    e("v_mbcnt_lo_u32_b32 v%d, -1, 0" % LN); e("v_mbcnt_hi_u32_b32 v%d, -1, v%d" % (LN, LN))
    a, b = TT, TT+1
    e("v_lshrrev_b32 v%d, 2, v%d" % (a, LN))
    e("v_bfe_u32 v%d, v%d, 3, 2" % (b, LN))
    e("v_lshlrev_b32 v%d, 5, v%d" % (b, b)); e("v_lshl_add_u32 v%d, v%d, 7, v%d" % (a, a, b))
    e("v_and_b32 v%d, 3, v%d" % (b, LN)); e("v_lshl_add_u32 v%d, v%d, 3, v%d" % (VA, b, a))
    for dt in range(1, 4): e("v_xor_b32 v%d, %d, v%d" % (VA+dt, 32*dt, VA))
def lane_consts2():
    a, b = TT, TT+1
    for ii in range(3):
        e("v_add_u32 v%d, %d, v%d" % (a, 64*ii, LN)); e("v_mul_u32_u24 v%d, 2731, v%d" % (a, a)); e("v_lshrrev_b32 v%d, 17, v%d" % (a, a))
        e("v_add_u32 v%d, s%d, v%d" % (a, sWv, a)); e("v_and_b32 v%d, 7, v%d" % (a, a))
        e("v_xor_b32 v%d, v%d, v%d" % (a, a, LN)); e("v_lshl_add_u32 v%d, v%d, 4, s%d" % (DK+ii, a, sW))
    e("v_and_b32 v%d, 15, v%d" % (a, LN)); e("v_mul_u32_u24 v%d, 384, v%d" % (a, a))
    e("s_mul_i32 s%d, s%d, 6" % (sT2, sW)); e("v_add_u32 v%d, s%d, v%d" % (a, sT2, a))
    if OPT['fl']:
        e("v_bfe_u32 v%d, v%d, 3, 1" % (b, LN)); e("v_mul_u32_u24 v%d, 3008, v%d" % (b, b)); e("v_sub_u32 v%d, v%d, v%d" % (a, a, b))
    e("v_lshrrev_b32 v%d, 4, v%d" % (b, LN)); e("v_lshl_add_u32 v%d, v%d, 4, v%d" % (QO, b, a))
    e("v_bfe_u32 v%d, v%d, 4, 1" % (b, LN)); e("v_lshl_add_u32 v%d, v%d, 5, v%d" % (a, b, a))
    e("v_lshrrev_b32 v%d, 5, v%d" % (b, LN)); e("v_lshl_add_u32 v%d, v%d, 4, v%d" % (OO, b, a))
XL = 6*ST
def qlds(c):
    pr, hf = divmod(c, 2)
    if pr < 3: return (sW, (QS + hf)*ST + pr*1024)
    if pr == 3: return (sW, (QS+2)*ST + hf*1024)
    return (sW2, XL + hf*1024)
NSTG = 10
def qload(c, QO=QO):
    pr, hf = divmod(c, 2); qt, u = divmod(pr, 3)
    e("s_add_u32 s%d, s%d, %d" % (sTq, sHn, 6144*qt + 3072*hf + 128*u if OPT['ql'] else OOB))
    if c < NSTG:
        sg, im = qlds(c)
        e("s_add_u32 m0, s%d, %d" % (sg, im)); e("s_nop 0")
        e("buffer_load_dwordx4 v%d, s[%d:%d], s%d offen%s lds" % (QO, SQ, SQ+3, sTq, POL[OPT['qp']]))
    else:
        e("buffer_load_dwordx4 %s, v%d, s[%d:%d], s%d offen%s" % (vr(4*(c-NSTG), 4), QO, SQ, SQ+3, sTq, POL[OPT['qp']]))
    return vm.issue()
def ostore(ps, k, d, so, oo):
    qt, dp = divmod(k, 2)
    e("s_add_u32 s%d, s%d, %d" % (sT2, so, 6144*qt))
    e("buffer_store_dwordx4 %s, v%d, s[%d:%d], s%d offen offset:%d%s" % (vr(d, 4), oo, SO, SO+3, sT2, 128*ps+(3072 if OPT['fl'] else 64)*dp, POL[OPT['op']])); vm.issue()
HOLD = [216, 220, 224, X, X+4, X+8]
def Dreg(ps, k): return (OD + 4*k) if ps == 2 else HOLD[k]
def conv(ps, dt, pkm=0):
    ops = []
    for qt in range(3):
        o = O + 16*qt + 4*dt; d = Dreg(ps, 2*qt + dt//2) + 2*(dt & 1)
        if pkm: ops += [(4, "v_pk_mul_f32 %s, %s, %s op_sel_hi:[1,0]" % (vr(o+2*i, 2), vr(o+2*i, 2), vr(L+2*qt, 2))) for i in range(2)]
        else: ops += [(4, "v_mul_f32 v%d, v%d, v%d" % (o+i, o+i, L+2*qt)) for i in range(4)]
        ops += [(4, "v_cvt_pk_bf16_f32 v%d, v%d, v%d" % (d+i, o+2*i, o+2*i+1)) for i in range(2)]
    return ops
def cv(ps): return conv(ps, 0) + conv(ps, 1) + conv(ps, 2) + conv(ps, 3)
def cvs(ps, k): return cv(ps)[(9*k+1)//2:(9*k+10)//2]
def shuf(ps, qt, t0, t1):
    a, b = Dreg(ps, 2*qt), Dreg(ps, 2*qt+1)
    ops = ["v_permlane16_swap_b32 v%d, v%d" % (d+i, d+2+i) for d in (a, b) for i in range(2)]
    for h in (0, 2):
        ops += ["v_mov_b32 v%d, v%d" % (t0, a+h), "v_mov_b32 v%d, v%d" % (t1, a+h+1)]
        ops += ["v_mov_b32_dpp v%d, v%d row_ror:8 row_mask:0xf bank_mask:0xc" % (a+h+i, b+h+i) for i in range(2)]
        ops += ["v_mov_b32_dpp v%d, v%d row_ror:8 row_mask:0xf bank_mask:0x3" % (b+h+i, (t0, t1)[i]) for i in range(2)]
    return [(4, x) for x in ops]
def swaps(d):
    e("v_permlane16_swap_b32 v%d, v%d" % (d, d+2)); e("v_permlane16_swap_b32 v%d, v%d" % (d+1, d+3))
def next_head():
    e("s_mul_i32 s%d, s%d, 147456" % (sHn, sHd)); e("s_cmp_ge_u32 s%d, %d" % (sHd, 0 if OPT['nomem'] else 256*OPT['nheads']))
    e("s_cselect_b32 s%d, 0x%x, s%d" % (sHn, OOB, sHn)); e("s_add_u32 s%d, s%d, 256" % (sHd, sHd))
e("s_cmp_ge_u32 s2, 256"); e("s_cbranch_scc1 L_end")
e("s_load_dwordx4 s[4:7], s[0:1], 0"); e("s_load_dwordx4 s[36:39], s[0:1], 16")
e("v_lshrrev_b32 v2, 6, v0"); e("v_and_b32 v1, 63, v0"); e("v_readfirstlane_b32 s40, v2")
e("v_and_b32 v3, 15, v1"); e("v_lshrrev_b32 v4, 4, v1")
e("v_mul_u32_u24 v5, 384, v3"); e("v_lshrrev_b32 v6, 1, v3"); e("v_xor_b32 v6, v6, v4")
e("v_lshl_add_u32 v%d, v6, 4, v5" % KA); e("v_xor_b32 v6, 4, v6"); e("v_lshl_add_u32 v%d, v6, 4, v5" % (KA+1))
e("v_mul_u32_u24 v5, 24, v2"); e("v_lshrrev_b32 v6, 3, v1"); e("v_add_u32 v5, v5, v6"); e("v_mul_u32_u24 v5, 384, v5")
e("v_lshlrev_b32 v6, 1, v4"); e("v_and_b32 v7, 7, v1"); e("v_xor_b32 v6, v6, v7"); e("v_lshl_add_u32 v%d, v6, 4, v5" % DV)
e("s_mul_i32 s%d, s40, 3072" % sW); e("s_lshl_b32 s%d, s40, 2" % sWv); e("s_lshl_b32 s%d, s40, 11" % sW2)
if OPT['prio']:
    e("s_cmp_ge_u32 s40, 4"); e("s_cbranch_scc0 L_np"); e("s_setprio 1"); lab("L_np")
lane_consts(); lane_consts2()
e("s_waitcnt lgkmcnt(0)")
for (d, src) in ((SQ, 4), (SK, 6), (SV, 36), (SO, 38)):
    e("s_mov_b32 s%d, s%d" % (d, src)); e("s_and_b32 s%d, s%d, 0xffff" % (d+1, src+1))
    e("s_mov_b32 s%d, %d" % (d+2, NB)); e("s_mov_b32 s%d, 0x00020000" % (d+3))
e("s_mov_b32 s%d, 0x%x" % (sC, f2u(C))); e("s_mov_b32 s%d, 0x%x" % (sC2, f2u(C))); e("s_mov_b32 s%d, 0x%x" % (sC2+1, f2u(C))); e("s_mov_b32 s%d, 0x%x" % (sTh, f2u(OPT['T'])))
e("s_mov_b32 s%d, s2" % sHd); e("s_mov_b32 s%d, 0" % sIt); e("s_mov_b32 s%d, 0x%x" % (sO, OOB))
next_head()
D1 = [('O', 1, 3), ('O', 1, 4), ('O', 1, 5)] + [('O', 2, k) for k in range(6)]
EV1 = {0: [('T', 1)], 1: [('T', 2)], 2: [('T', 3)], 4: [('T', 4)], 8: [('T', 5)], 9: [('T', 6)], 12: [('T', 7)], 16: [('T', 8)], 17: [('T', 9)], 20: [('T', 10)]}
for i, uu in enumerate({0: (5, 6, 7, 10, 11, 13, 14, 15, 18), 1: (3, 5, 6, 7, 10, 11, 13, 14, 15)}[OPT['sched'] % 2]):
    EV1.setdefault(uu, []).append(D1[(3+i) % 9])
EV2 = {0: [('T', 11)], 2: [('Q', 8)], 4: [('Q', 9)], 6: [('T', 12)]}
for i, c in enumerate((0, 2, 4, 1, 3, 5, 6, 7)): EV2.setdefault(12 + 2*i, []).append(('Q', c))
for i, pp in enumerate((14, 15, 17, 19, 21, 22)): EV2.setdefault(pp, []).append(('O', 0, i))
for i in range(8): EV2.setdefault(OPT['qd0'] + i, []).append(('Q', NSTG + i))
for i in range(3): EV2.setdefault(31 + 2*i, []).append(('O', 1, i))
if OPT['ns']:
    EV1 = {0: [('T', 2)], 1: [('T', 3)], 2: [('T', 4)], 3: [('T', 5)], 4: [('T', 6)], 8: [('T', 7)], 12: [('T', 8)], 16: [('T', 9)], 20: [('T', 10)]}
    for i, uu in enumerate({0: (5, 6, 7, 9, 10, 11, 13, 14, 15), 1: (6, 9, 10, 11, 13, 14, 15, 17, 18), 2: (9, 10, 11, 13, 14, 15, 17, 18, 19)}[OPT['sched'] % 3]):
        EV1.setdefault(uu, []).append(D1[(3+i) % 9])
    EV2 = {0: [('T', 11)], 2: [('Q', 8)], 4: [('Q', 9)], 6: [('T', 12)], 12: [('T', 13)], 18: [('Q', 0)], 19: [('Q', 2)], 20: [('Q', 4)],
           24: [('Q', 1), ('Q', 3)], 25: [('Q', 10), ('Q', 11)], 26: [('Q', 12), ('Q', 13)], 27: [('Q', 14), ('Q', 15)], 28: [('Q', 16), ('Q', 17)], 29: [('Q', 5)], 30: [('Q', 6), ('Q', 7)]}
    for i, pp in enumerate((14, 15, 16, 17, 21, 22)): EV2.setdefault(pp, []).append(('O', 0, i))
    for i in range(3): EV2.setdefault(31 + 2*i, []).append(('O', 1, i))
if OPT['sched'] >= 3:
    EV1 = {0: [('T', 2)], 2: [('T', 3)], 4: [('T', 4)], 8: [('T', 5)], 12: [('T', 6)], 16: [('T', 7)], 18: [('T', 8)], 20: [('T', 9)], 22: [('T', 10)]}
    for i, uu in enumerate((5, 6, 7, 9, 10, 11, 13, 14, 15)): EV1.setdefault(uu, []).append(D1[(3+i) % 9])
    EV2 = {0: [('T', 11)], 3: [('Q', 8)], 4: [('Q', 9)], 6: [('T', 12)], 12: [('T', 13)], 18: [('Q', 0)], 19: [('Q', 2)], 20: [('Q', 4)]}
    QP = {3: (24, 25, 25, 26, 27, 27, 28, 29, 30, 30, 31, 31, 32), 4: (24, 25, 26, 27, 28, 29, 30, 30, 31, 31, 32, 32, 33), 5: (24, 24, 25, 25, 26, 26, 27, 27, 28, 28, 29, 30, 30)}[OPT['sched']]
    for pp, c in zip(QP, (1, 3, 10, 11, 5, 12, 13, 14, 15, 16, 17, 6, 7)): EV2.setdefault(pp, []).append(('Q', c))
    for i, pp in enumerate((14, 15, 16, 21, 22, 23)): EV2.setdefault(pp, []).append(('O', 0, i))
    for i, pp in enumerate((33, 34, 35)): EV2.setdefault(pp, []).append(('O', 1, i))
if M3:
    EV1 = {0: [('T', 2)], 2: [('T', 3)], 4: [('T', 4)], 8: [('T', 5)], 12: [('T', 6)], 16: [('T', 7)], 18: [('T', 8)],
           19: [('Q', 0)], 20: [('Q', 2), ('Q', 4)], 21: [('Q', 1), ('Q', 3), ('Q', 5)]}
    for i, uu in enumerate((5, 6, 7, 9, 10, 11, 13, 14, 15)): EV1.setdefault(uu, []).append(D1[(3+i) % 9])
    EV2 = {2: [('Q', 6)], 3: [('Q', 7)], 4: [('Q', 8)], 5: [('Q', 9)], 6: [('T', 9)], 12: [('T', 10)], 18: [('T', 11)], 24: [('T', 12)], 30: [('T', 13)]}
    if OPT['qv'] == 1:
        EV1[21] = []; EV1[20] = [('Q', 2)]; EV1[21] = [('Q', 4)]
        EV2.update({2: [('Q', 1)], 3: [('Q', 3)], 4: [('Q', 5)], 5: [('Q', 6)], 8: [('Q', 7)], 9: [('Q', 8)], 10: [('Q', 9)]})
    for i in range(8): EV2.setdefault(25 + i//2, []).append(('Q', NSTG + i))
    for i, pp in enumerate((14, 15, 16, 20, 21, 22)): EV2.setdefault(pp, []).append(('O', 0, i))
    for i, pp in enumerate((32, 33, 34)): EV2.setdefault(pp, []).append(('O', 1, i))
def event(ev, ph1):
    global qid
    if ev[0] == 'T': tid[ev[1]] = dma(ev[1])
    elif ev[0] == 'Q': qid = qload(ev[1], QO1 if ph1 else QO)
    elif ph1: ostore(ev[1], ev[2], (OD + 4*ev[2]) if ev[1] == 2 else (OD2 + 4*(ev[2]-3)), sOp, OO1)
    else: ostore(ev[1], ev[2], HOLD[ev[2]], sO, OO)
tline(sIt, 0)
dma(12)
for c in range(18): qload(c)
if OPT['ns']: dma(13)
e("s_waitcnt vmcnt(0)")
e("s_barrier")
e("s_branch L_entry")
out.append(".p2align 6")
lab("L_head")
tline(sIt, 0)
stamp()
if OPT['stamp']: e("s_memrealtime s[96:97]")
e("s_mov_b64 s[%d:%d], 0" % (sMk, sMk+1))
vm = Cnt(); tid = {}
if M3:
    tid[1] = vm.issue()
    for i in range(3): vm.issue()
lg = Cnt()
cp = OPT['compute']
LA1, LA2 = OPT['la1'], OPT['la2']
pend = {}
for n in range(LA1): pend[n] = lg.issue()
lg.done = lg.n
def spread(ops, slots, fn_slot, start=0):
    tot = sum(c for c, _ in ops); done = 0; oi = 0
    for k in range(slots):
        fn_slot(k)
        if k >= start:
            target = tot * (k - start + 1) / (slots - start)
            while oi < len(ops) and done + ops[oi][0]/2 <= target:
                emit_op(ops[oi]); done += ops[oi][0]; oi += 1
    while oi < len(ops): emit_op(ops[oi]); oi += 1
for u in range(24):
    p = u // 4
    if u % 4 == 0 and p > 0:
        if p+1 not in SP: wait_vm(tid[p+1])
        elif p in SP: wait_vm(tid[p])
        e("s_barrier"); stamp()
        if p in SP and cp:
            for n in range(24*p, 24*p+LA1): pend[n] = kread(n, POOL1[n % 4])
    ops = softmax(u-1) if (u > 0 and cp) else []
    evs = EV1.get(u, [])
    def slot(k):
        t, qt = divmod(k, 3); n = u*6 + t
        if k % 6 == 3 and k // 6 < len(evs): event(evs[k // 6], True)
        if not (cp and OPT['p1']): return
        if qt == 0: wait_lg(pend[n+1] if (OPT['w2'] and n % 2 == 0) else pend[n])
        kmfma(n, POOL1[n % 4], qt)
        if qt == 0 and n+LA1 < 144 and not ((n+LA1)//24 in SP and n//24 != (n+LA1)//24): pend[n+LA1] = kread(n+LA1, POOL1[(n+LA1) % 4])
    spread(ops, 18, slot, start=(0 if (u % 4 == 0 and u//4 in SP) else 6))
wait_vm(tid[7]); e("s_barrier"); stamp()
lab("L_p2")
lane_consts()
pend = {}
NP = len(POOL2)
NCH = 12 if OPT['oc'] else 19
if cp:
    for n in range(LA2): pend[n] = vread(n, POOL2[n % NP])
    o23 = softmax(23)
    for op in o23[:NCH]: emit_op(op)
LAC = 216; ONE = X
def lmf(j):
    return [(8, MF % (vr(LAC+4*qt, 4), vr(ONE, 4), vr(12*j+4*qt, 4), "0" if j == 0 else vr(LAC+4*qt, 4))) for qt in range(3)]
for pj in range(36):
    ps, j = divmod(pj, 12); p = 6 + pj // 6
    if pj % 6 == 0 and p > 6:
        if not (M3 and p >= 8): wait_vm(tid[p+1])
        e("s_barrier"); stamp()
    if M3 and pj % 6 == 5 and p >= 8:
        wait_vm(tid[p+1]); e("s_barrier")
    ops = []; fixed = {}
    def okchk():
        e("v_and_b32 v%d, 0x40004000, v%d" % (T0, T2)); e("v_cmp_ne_u32 vcc, 0, v%d" % T0)
        e("s_andn2_b64 s[46:47], vcc, s[%d:%d]" % (sMk, sMk+1)); e("s_cbranch_scc1 L_slow")
    if pj == 0 and cp: ops = o23[NCH:] + ([(12, okchk)] if OPT['oc'] else []) + ([(4, "v_mov_b32 v%d, 0x3f803f80" % (ONE+i)) for i in range(4)] if OPT['ones'] else [])
    if pj == 1 and not OPT['sh']: ops = [(4, lane_consts2)]
    if pj in (1, 2) and OPT['sh']:
        sv = out; out = []; lane_consts2(); lc = [(4, x.strip()) for x in out]; out = sv
        ops = lc[:13] if pj == 1 else lc[13:]
    if OPT['ones'] and cp:
        if pj == 1: fixed[0] = lmf(0); fixed[6] = lmf(1)
        elif 1 < pj < 11: fixed[0] = lmf(pj)
        if pj == 10: fixed[6] = lmf(11)
        if pj == 11: fixed[2] = [(8, "v_rcp_f32 v%d, v%d" % (L+2*qt, LAC+4*qt)) for qt in range(3)]
    elif pj == 2:
        for qt in range(3): ops += [(4, s) for s in xlane("v_add_f32", L+2*qt, T0)] + [(8, "v_rcp_f32 v%d, v%d" % (L+2*qt, L+2*qt))]
    if j == 11:
        for k in range(6): fixed[6+k] = cvs(ps, k)
    if j == 0 and ps > 0:
        for k in range(10): fixed[k] = cvs(ps-1, 6+k)
        fixed[11] = shuf(ps-1, 0, T0, T1)[:4]
    if OPT['sh']:
        if j == 1 and ps > 0: ops = shuf(ps-1, 0, T0, T1)[4:]
        if 2 <= j <= 5 and ps > 0: ops = shuf(ps-1, 1 + (j-2)//2, T0, T1)[8*(j % 2):8*(j % 2)+8]
    else:
        if j == 1 and ps > 0: ops = shuf(ps-1, 0, T0, T1)[4:] + shuf(ps-1, 1, T0, T1)
        if j == 2 and ps > 0: ops = shuf(ps-1, 2, T0, T1)
    evs = EV2.get(pj, [])
    def slot(k):
        dt, qt = divmod(k, 3); n = pj*4 + dt
        if k % 6 == 3 and k // 6 < len(evs): event(evs[k // 6], False)
        if cp and OPT['p2']:
            if qt == 0: wait_lg(pend[n+1] if (OPT['w2'] and n % 2 == 0) else pend[n])
            vmfma(n, POOL2[n % NP], qt)
            if qt == 0 and n+LA2 < 144: pend[n+LA2] = vread(n+LA2, POOL2[(n+LA2) % NP])
        for op in fixed.get(k, []): emit_op(op)
    spread(ops, 12, slot, start=0)
    if j == 11 and ps < 2: stamp()
stamp()
lab("L_entry")
lg = Cnt()
if cp:
    for n in range(LA1): kread(n, POOL1[n])
e("s_mov_b32 s%d, s%d" % (sH, sHn)); e("s_mov_b32 s%d, s%d" % (sOp, sO))
for op in cv(2)[27:36]: emit_op(op)
for i in range(3): e("v_mov_b32 v%d, v%d" % (DK1+i, DK+i))
e("v_mov_b32 v%d, v%d" % (OO1, OO)); e("v_mov_b32 v%d, v%d" % (QO1, QO))
e("v_and_b32 v%d, 0x37, v%d" % (T0, LN)); e("v_lshl_add_u32 v%d, v%d, 4, s%d" % (T0, T0, sW)); e("v_bfe_u32 v%d, v%d, 3, 1" % (T1, LN))
e("v_lshl_add_u32 v%d, v%d, 10, v%d" % (T2, T1, T0)); e("v_mul_u32_u24 v%d, 0x%x, v%d" % (T1, ST, T1)); e("v_add_u32 v%d, v%d, v%d" % (T0, T0, T1))
e("v_add_u32 v%d, 0x%x, v%d" % (T2, (QS+2)*ST, T2)); e("v_add_u32 v%d, 0x%x, v%d" % (T0, QS*ST, T0))
e("s_sub_u32 s%d, s%d, s%d" % (sT, sW2, sW)); e("s_add_u32 s%d, s%d, %d" % (sT, sT, XL - (QS+2)*ST)); e("v_add_u32 v%d, s%d, v%d" % (T1, sT, T2))
for op in conv(2, 2, 1) + conv(2, 3, 1): emit_op(op)
e("s_mov_b32 s%d, s%d" % (sO, sHn if OPT['st'] else sO))
next_head()
stamp()
wait_vm(qid)
stamp()
for c in range(NSTG):
    pr, hf = divmod(c, 2)
    a, im = (T0, pr*1024) if pr < 3 else ((T2, 0) if pr == 3 else (T1, 0))
    e("ds_read_b128 %s, v%d offset:%d" % (vr(Q+4*c, 4), a, im + 128*hf))
for i in range(6): e("v_pk_mov_b32 %s, %s, %s op_sel:[0,1]" % (vr(OD2+2*i, 2), vr(X+2*i, 2), vr(X+2*i, 2)))
for pr in range(4):
    A, B, FA, FB_ = 8*pr, 8*pr+4, Q+4*NSTG+8*pr, Q+4*NSTG+8*pr+4
    for i in range(4): e("v_pk_mov_b32 %s, %s, %s op_sel:[0,1]" % (vr(FA+2*i, 2), vr(A+2*i, 2), vr(A+2*i, 2)))
    for i in range(4): e("v_mov_b32_dpp v%d, v%d row_ror:8 row_mask:0xf bank_mask:0xc" % (FA+i, B+i))
    for i in range(4): e("v_mov_b32_dpp v%d, v%d row_ror:8 row_mask:0xf bank_mask:0x3" % (FB_+i, A+i))
for qt in range(3):
    for op in shuf(2, qt, X, X+1): emit_op(op)
e("s_waitcnt lgkmcnt(0)")
e("s_barrier")
if OPT['stamp']:
    stamp()
    e("s_memrealtime s[%d:%d]" % (50+2*nst[0], 51+2*nst[0])); e("s_waitcnt lgkmcnt(0)")
    e("s_sub_u32 s%d, s%d, s96" % (50+2*nst[0], 50+2*nst[0])); e("s_add_u32 s%d, s%d, s50" % (50+2*nst[0], 50+2*nst[0])); nst[0] += 1
    e("s_cmp_lg_u32 s%d, 2" % sIt); e("s_cbranch_scc1 L_nost"); e("s_cmp_lg_u32 s2, %d" % (OPT['stamp']-1)); e("s_cbranch_scc1 L_nost")
    e("s_and_b32 s41, s40, 3"); e("s_cmp_lg_u32 s41, 0"); e("s_cbranch_scc1 L_nost")
    e("s_load_dwordx2 s[44:45], s[0:1], 32"); e("s_waitcnt lgkmcnt(0)"); e("s_mov_b32 s46, 256"); e("s_mov_b32 s47, 0x00020000")
    e("s_and_b32 s45, s45, 0xffff"); e("s_lshl_b32 s41, s40, 5"); e("v_mov_b32 v%d, s41" % T1)
    for i in range(nst[0]):
        e("s_sub_u32 s41, s%d, s50" % (50+2*i)); e("v_mov_b32 v%d, s41" % T0)
        e("buffer_store_dword v%d, v%d, s[44:47], 0 offen offset:%d" % (T0, T1, 4*i)); e("s_waitcnt vmcnt(0)")
    lab("L_nost")
e("s_add_u32 s%d, s%d, 1" % (sIt, sIt)); e("s_cmp_le_u32 s%d, %d" % (sIt, OPT['nheads'])); e("s_cbranch_scc1 L_head")
tline(sIt, 0)
for ev in D1: event(ev, True)
if OPT['tl']: e("s_waitcnt vmcnt(0)"); tline(sIt, 1)
lab("L_end")
e("s_endpgm")
if OPT['oc'] and cp: slowpath()
for s in (slow if cp else []): (out.append(s) if s.endswith(':') else e(s))
hdr = open('cdna_kernels/%s.s.ref' % NAME).read().split('\n')
hdr = [l for l in hdr if l.startswith(';') and '@launch' not in l]
txt = '\n'.join(hdr) + "\n; @launch grid=(256,1,1) block=(512,1,1) lds=163840\n"
txt += '.amdgcn_target "amdgcn-amd-amdhsa--gfx950"\n.text\n.globl %s_kernel\n.p2align 8\n.type %s_kernel,@function\n%s_kernel:\n' % (NAME, NAME, NAME)
txt += '\n'.join(out) + "\n"
txt += """.section .rodata,"a"
.p2align 6
.amdhsa_kernel %s_kernel
  .amdhsa_next_free_vgpr 256
  .amdhsa_next_free_sgpr 100
  .amdhsa_accum_offset 256
  .amdhsa_group_segment_fixed_size 0
  .amdhsa_kernarg_size 48
  .amdhsa_user_sgpr_count 2
  .amdhsa_user_sgpr_kernarg_segment_ptr 1
  .amdhsa_system_sgpr_workgroup_id_x 1
.end_amdhsa_kernel
""" % NAME
open(sys.argv[1], 'w').write(txt)
```

```python
import sys, struct, math
OPT = dict(compute=1, T=8.0, nheads=4, dmapos=1, kvp=1, qp=1, op=0, la1=3, la2=3, prio=0, st=1, p1=1, p2=1, nomem=0, ql=1, stamp=0, sched=5, defer=1, qd=2, qd0=27, fl=1, pk=0, tl=0, ones=1, w2=1, ns=1, sp3=0, m3=0, qv=0, sh=1, oc=2, e0=1, pro=1)
for a in sys.argv[2:]:
    k, v = a.split('='); OPT[k] = float(v) if '.' in v else int(v)
POL = ['', ' nt', ' sc1', ' sc0 sc1', ' sc1 nt', ' sc0 sc1 nt']
NAME = "standalone__mha_softmax__near_ridge"
NB = 32*32*384*192*2
ST = 24576
OOB = 0x10000000
def f2u(x): return struct.unpack('<I', struct.pack('<f', x))[0]
C = 192**-0.5 * math.log2(math.e)
X = 144; Q = 156; O = 156; VA = 204; DK = 208; QO = 211; OO = 212; LN = 213; TT = 214
DK1 = 132; OO1 = 135; OD = 96; OD2 = 120
FB = 228; MC = 245; L = 244; KA = 250; DV = 252; T0 = 253; T1 = 254; T2 = 255
POOL1 = [FB+4*i for i in range(4)]
POOL2 = POOL1
SQ, SK, SV, SO = 8, 12, 16, 20
sH, sHn, sO, sIt, sC, sW, sT, sWv, sTh, sT2, sHd, sOp, sTq, sW2 = 24, 25, 26, 28, 29, 30, 31, 32, 33, 34, 35, 27, 42, 43
sC2 = 48
M3 = OPT['m3']
QS = 3 if M3 else 1 + OPT['ns']
QO1 = 136
SP = ({2, 3} if OPT['sp3'] else {2}) if OPT['ns'] else {1}
if M3 or OPT['pro']: SP = SP | {1}
OPT_Q = {2: (1, 7), 3: (1, 5, 9)}[OPT['qd']]
out = []
def e(s): out.append("    " + s)
def lab(s): out.append(s + ":")
def vr(b, n): return "v[%d:%d]" % (b, b+n-1)
class Cnt:
    def __init__(s): s.n = 0; s.done = 0
    def issue(s): s.n += 1; return s.n
lg = Cnt(); vm = Cnt()
def wait_lg(i):
    if i <= lg.done: return
    n = lg.n - i; assert n <= 15, n
    e("s_waitcnt lgkmcnt(%d)" % n); lg.done = i
def wait_vm(i):
    if i <= vm.done: return
    n = vm.n - i; assert n <= 63, n
    e("s_waitcnt vmcnt(%d)" % n); vm.done = i
nst = [0]
def stamp():
    if OPT['stamp']:
        e("s_memtime s[%d:%d]" % (50+2*nst[0], 51+2*nst[0])); nst[0] += 1
ntl = [0]
def tline(idx_sgpr, add):
    if not OPT['tl']: return
    ntl[0] += 1; lb = "L_tl%d" % ntl[0]
    e("s_and_b32 s41, s2, 63"); e("s_or_b32 s41, s41, s40"); e("s_cmp_lg_u32 s41, 0"); e("s_cbranch_scc1 " + lb)
    e("s_memrealtime s[50:51]"); e("s_load_dwordx2 s[44:45], s[0:1], 32"); e("s_waitcnt lgkmcnt(0)"); e("s_mov_b32 s46, 256"); e("s_mov_b32 s47, 0x00020000")
    e("s_and_b32 s45, s45, 0xffff"); e("s_lshr_b32 s41, s2, 6"); e("s_lshl_b32 s41, s41, 3"); e("s_add_u32 s41, s41, s%d" % idx_sgpr); e("s_add_u32 s41, s41, %d" % add)
    e("s_lshl_b32 s41, s41, 2"); e("v_mov_b32 v%d, s41" % T1); e("v_mov_b32 v%d, s50" % T0)
    e("buffer_store_dword v%d, v%d, s[44:47], 0 offen" % (T0, T1)); e("s_waitcnt vmcnt(0)"); lab(lb)
def Sreg(j, kt, qt): return (12*j if kt == 0 else X) + 4*qt
def dma(t):
    slot = (t-6) % 3 if (M3 and 6 <= t < 12) else t % 6
    e("s_add_u32 m0, s%d, %d" % (sW, slot*ST))
    if 6 <= t < 12:
        i = t - 6
        for ii in range(3):
            e("s_add_u32 s%d, s%d, %d" % (sT, sH, (i % 2)*192*384 + (i//2)*128 + 2048*ii))
            e("buffer_load_dwordx4 v%d, s[%d:%d], s%d offen offset:%d%s lds" % (DV, SV, SV+3, sT, 1024*ii, POL[OPT['kvp']])); r = vm.issue()
    else:
        e("s_add_u32 s%d, s%d, %d" % (sT, sHn if t >= 12 else sH, (t % 12)*ST))
        for ii in range(3):
            e("buffer_load_dwordx4 v%d, s[%d:%d], s%d offen offset:%d%s lds" % ((DK if t >= 12 else DK1)+ii, SK, SK+3, sT, 1024*ii, POL[OPT['kvp']])); r = vm.issue()
    return r
def kread(n, b):
    u, t = divmod(n, 6); j, kt = divmod(u, 2); s = j // 2
    if n % 48 == 0 and n > 0:
        for i in range(2): e("v_add_u32 v%d, 0xc000, v%d" % (KA+i, KA+i))
    e("ds_read_b128 %s, v%d offset:%d" % (vr(b, 4), KA+(t & 1), (s % 2)*ST + (32*(j % 2)+16*kt)*384 + 128*(t >> 1)))
    r = lg.issue()
    if n == 143:
        for i in range(2): e("v_subrev_u32 v%d, 0x18000, v%d" % (KA+i, KA+i))
    return r
def vread(n, b):
    pj, dt = divmod(n, 4); ps, j = divmod(pj, 12); s = ps*2 + j // 6
    if M3:
        if n % 24 == 0 and s in (2, 3, 5):
            for i in range(4): e("%s v%d, 0xc000, v%d" % ("v_subrev_u32" if s == 3 else "v_add_u32", VA+i, VA+i))
        s = s % 3
    elif n % 48 == 0 and n > 0:
        for i in range(4): e("v_add_u32 v%d, 0xc000, v%d" % (VA+i, VA+i))
    for i2 in range(2):
        e("ds_read_b64_tr_b16 %s, v%d offset:%d" % (vr(b+2*i2, 2), VA+dt, (s % 2)*ST + (32*(j % 6)+16*i2)*128))
        r = lg.issue()
    return r
MF = "v_mfma_f32_16x16x32_bf16 %s, %s, %s, %s"
def kmfma(n, b, qt):
    u, t = divmod(n, 6); j, kt = divmod(u, 2); s = Sreg(j, kt, qt)
    e(MF % (vr(s, 4), vr(b, 4), vr(Q+24*qt+4*t, 4), "0" if t == 0 else vr(s, 4)))
def vmfma(n, b, qt):
    pj, dt = divmod(n, 4); ps, j = divmod(pj, 12); o = O + 16*qt + 4*dt
    e(MF % (vr(o, 4), vr(b, 4), vr(12*j+4*qt, 4), "0" if j == 0 else vr(o, 4)))
slow = []
def xlane(op, a, b):
    r = []
    for sw in ("v_permlane16_swap_b32", "v_permlane32_swap_b32"):
        r += ["v_mov_b32 v%d, v%d" % (b, a), "s_nop 1", "%s v%d, v%d" % (sw, a, b), "s_nop 1", "%s v%d, v%d, v%d" % (op, a, a, b)]
    return r
def softmax(u):
    j, kt = divmod(u, 2)
    R = [Sreg(j, kt, qt) for qt in range(3)]
    ops = []
    if u == 0:
        for qt in range(3):
            r = R[qt]
            ops += [(4, "v_max3_f32 v%d, v%d, v%d, v%d" % (T0, r, r+1, r+2)), (4, "v_max_f32 v%d, v%d, v%d" % (T0, T0, r+3))]
            ops += [(4, s) for s in xlane("v_max_f32", T0, T1)]
            ops += [(4, "v_mul_f32 v%d, s%d, v%d" % (MC+2*qt, sC, T0)), (4, ("v_add_f32 v%d, s%d, v%d" % (MC+2*qt, sTh, MC+2*qt)) if OPT['oc'] else ("v_mov_b32 v%d, 0" % (L+2*qt)))]
    for qt in range(3):
        if OPT['pk']:
            for i in (0, 2): ops.append((4, "v_pk_fma_f32 %s, %s, s[%d:%d], %s op_sel:[0,0,1] op_sel_hi:[1,1,1] neg_lo:[0,0,1] neg_hi:[0,0,1]" % (vr(R[qt]+i, 2), vr(R[qt]+i, 2), sC2, sC2+1, vr(L+2*qt, 2))))
        else:
            for i in range(4): ops.append((4, "v_fma_f32 v%d, v%d, s%d, -v%d" % (R[qt]+i, R[qt]+i, sC, MC+2*qt)))
    if u > 0 and not OPT['oc']:
        a = [R[qt]+i for qt in range(3) for i in range(4)]
        ops += [(4, "v_max3_f32 v%d, v%d, v%d, v%d" % (T0, a[0], a[1], a[2])), (4, "v_max3_f32 v%d, v%d, v%d, v%d" % (T1, a[3], a[4], a[5])),
                (4, "v_max3_f32 v%d, v%d, v%d, v%d" % (T0, T0, a[6], a[7])), (4, "v_max3_f32 v%d, v%d, v%d, v%d" % (T1, T1, a[8], a[9])),
                (4, "v_max3_f32 v%d, v%d, v%d, v%d" % (T0, T0, a[10], a[11])), (4, "v_max_f32 v%d, v%d, v%d" % (T0, T0, T1))]
        def chk():
            e("v_cmp_lt_f32 vcc, s%d, v%d" % (sTh, T0)); e("s_cbranch_vccnz L_slow%d" % u); lab("L_back%d" % u)
        ops.append((8, chk))
        blk = ["L_slow%d:" % u]
        for qt in range(3):
            r = R[qt]
            blk += ["v_max3_f32 v%d, v%d, v%d, v%d" % (T0, r, r+1, r+2), "v_max3_f32 v%d, v%d, v%d, 0" % (T0, T0, r+3)]
            blk += xlane("v_max_f32", T0, T1)
            blk += ["v_add_f32 v%d, v%d, v%d" % (MC+2*qt, MC+2*qt, T0)]
            blk += ["v_sub_f32 v%d, v%d, v%d" % (r+i, r+i, T0) for i in range(4)]
            blk += ["v_exp_f32 v%d, -v%d" % (T0, T0), "s_nop 0", "v_mul_f32 v%d, v%d, v%d" % (L+2*qt, L+2*qt, T0)]
            regs = [12*jj+4*qt+i for jj in range(j) for i in range(4)] + ([12*j+4*qt, 12*j+4*qt+1] if kt else [])
            for p in regs:
                blk += ["v_lshlrev_b32 v%d, 16, v%d" % (T1, p), "v_and_b32 v%d, 0xffff0000, v%d" % (T2, p),
                        "v_mul_f32 v%d, v%d, v%d" % (T1, T1, T0), "v_mul_f32 v%d, v%d, v%d" % (T2, T2, T0),
                        "v_cvt_pk_bf16_f32 v%d, v%d, v%d" % (p, T1, T2)]
        blk += ["s_branch L_back%d" % u]
        slow.extend(blk)
    seq = [(qt, i) for qt in range(3) for i in range(4)]
    for n in range(12+2):
        if n < 12:
            qt, i = seq[n]; ops.append((8, "v_exp_f32 v%d, v%d" % (R[qt]+i, R[qt]+i)))
        if n >= 2:
            qt, i = seq[n-2]
            if not OPT['ones']: ops.append((4, "v_add_f32 v%d, v%d, v%d" % (L+2*qt, L+2*qt, R[qt]+i)))
            if i & 1: ops.append((4, "v_cvt_pk_bf16_f32 v%d, v%d, v%d" % (12*j+4*qt+2*kt+i//2, R[qt]+i-1, R[qt]+i)))
    if OPT['oc'] == 1 and chk_on:
        idx = [i for i, o in enumerate(ops) if o[1].startswith("v_cvt_pk")]
        for qt in (2, 1, 0):
            pr = 12*j+4*qt+2*kt
            ops.insert(min(idx[2*qt+1]+2, len(ops)), (4, "v_or3_b32 v%d, v%d, v%d, %s" % (T2, pr, pr+1, "0" if (u == 0 and qt == 0) else "v%d" % T2)))
    return ops
chk_on = True
sMk = 44
def slowpath():
    global chk_on
    chk_on = False
    lab("L_slow")
    e("s_waitcnt vmcnt(0) lgkmcnt(0)"); e("s_mov_b64 s[%d:%d], -1" % (sMk, sMk+1)); e("s_nop 7"); e("s_nop 7")
    e("v_mbcnt_lo_u32_b32 v%d, -1, 0" % T0); e("v_mbcnt_hi_u32_b32 v%d, -1, v%d" % (T0, T0))
    e("v_lshrrev_b32 v%d, 4, v%d" % (T1, T0)); e("v_and_b32 v%d, 15, v%d" % (T0, T0)); e("v_mul_u32_u24 v%d, 384, v%d" % (T0, T0))
    e("v_lshl_add_u32 v%d, v%d, 4, v%d" % (T2, T1, T0))
    e("s_mul_i32 s%d, s%d, 6" % (sT, sW)); e("s_add_u32 s%d, s%d, s%d" % (sT, sT, sH))
    for qt in range(3):
        for t in range(6): e("buffer_load_dwordx4 %s, v%d, s[%d:%d], s%d offen offset:%d" % (vr(Q+24*qt+4*t, 4), T2, SQ, SQ+3, sT, 64*t))
        e("s_add_u32 s%d, s%d, 6144" % (sT, sT))
    def unit(R):
        for h in range(2):
            for t in range(3): e("buffer_load_dwordx4 %s, v%d, s[%d:%d], s%d offen offset:%d" % (vr(FB+4*t, 4), T2, SK, SK+3, sT, 64*(3*h+t)))
            e("s_waitcnt vmcnt(0)")
            for t in range(3):
                for qt in range(3): e(MF % (vr(R[qt], 4), vr(FB+4*t, 4), vr(Q+24*qt+4*(3*h+t), 4), "0" if 3*h+t == 0 else vr(R[qt], 4)))
            e("s_nop 7"); e("s_nop 7"); e("s_nop 7")
        e("s_add_u32 s%d, s%d, 6144" % (sT, sT))
    for qt in range(3): e("v_mov_b32 v%d, 0xff800000" % (MC+2*qt))
    e("s_mov_b32 s%d, s%d" % (sT, sH)); e("s_mov_b32 s%d, 0" % sT2)
    lab("L_slow_a")
    unit([X+4*qt for qt in range(3)])
    for qt in range(3):
        r = X+4*qt; m = MC+2*qt
        e("v_max3_f32 v%d, v%d, v%d, v%d" % (m, m, r, r+1)); e("v_max3_f32 v%d, v%d, v%d, v%d" % (m, m, r+2, r+3))
    e("s_add_u32 s%d, s%d, 1" % (sT2, sT2)); e("s_cmp_lt_u32 s%d, 24" % sT2); e("s_cbranch_scc1 L_slow_a")
    for qt in range(3):
        for x in xlane("v_max_f32", MC+2*qt, T1): e(x)
        e("v_mul_f32 v%d, s%d, v%d" % (MC+2*qt, sC, MC+2*qt))
    e("s_mov_b32 s%d, s%d" % (sT, sH))
    for u in range(24):
        unit([Sreg(u//2, u % 2, qt) for qt in range(3)])
        if u < 23:
            for op in softmax(u)[-30:]: emit_op(op)
    e("s_branch L_p2")
    chk_on = True
def emit_op(op):
    if callable(op[1]): op[1]()
    else: e(op[1])
def lane_consts():
    e("v_mbcnt_lo_u32_b32 v%d, -1, 0" % LN); e("v_mbcnt_hi_u32_b32 v%d, -1, v%d" % (LN, LN))
    a, b = TT, TT+1
    e("v_lshrrev_b32 v%d, 2, v%d" % (a, LN))
    e("v_bfe_u32 v%d, v%d, 3, 2" % (b, LN))
    e("v_lshlrev_b32 v%d, 5, v%d" % (b, b)); e("v_lshl_add_u32 v%d, v%d, 7, v%d" % (a, a, b))
    e("v_and_b32 v%d, 3, v%d" % (b, LN)); e("v_lshl_add_u32 v%d, v%d, 3, v%d" % (VA, b, a))
    for dt in range(1, 4): e("v_xor_b32 v%d, %d, v%d" % (VA+dt, 32*dt, VA))
def lane_consts2():
    a, b = TT, TT+1
    for ii in range(3):
        e("v_add_u32 v%d, %d, v%d" % (a, 64*ii, LN)); e("v_mul_u32_u24 v%d, 2731, v%d" % (a, a)); e("v_lshrrev_b32 v%d, 17, v%d" % (a, a))
        e("v_add_u32 v%d, s%d, v%d" % (a, sWv, a)); e("v_and_b32 v%d, 7, v%d" % (a, a))
        e("v_xor_b32 v%d, v%d, v%d" % (a, a, LN)); e("v_lshl_add_u32 v%d, v%d, 4, s%d" % (DK+ii, a, sW))
    e("v_and_b32 v%d, 15, v%d" % (a, LN)); e("v_mul_u32_u24 v%d, 384, v%d" % (a, a))
    e("s_mul_i32 s%d, s%d, 6" % (sT2, sW)); e("v_add_u32 v%d, s%d, v%d" % (a, sT2, a))
    if OPT['fl']:
        e("v_bfe_u32 v%d, v%d, 3, 1" % (b, LN)); e("v_mul_u32_u24 v%d, 3008, v%d" % (b, b)); e("v_sub_u32 v%d, v%d, v%d" % (a, a, b))
    e("v_lshrrev_b32 v%d, 4, v%d" % (b, LN)); e("v_lshl_add_u32 v%d, v%d, 4, v%d" % (QO, b, a))
    e("v_bfe_u32 v%d, v%d, 4, 1" % (b, LN)); e("v_lshl_add_u32 v%d, v%d, 5, v%d" % (a, b, a))
    e("v_lshrrev_b32 v%d, 5, v%d" % (b, LN)); e("v_lshl_add_u32 v%d, v%d, 4, v%d" % (OO, b, a))
XL = 6*ST
def qlds(c):
    pr, hf = divmod(c, 2)
    if pr < 3: return (sW, (QS + hf)*ST + pr*1024)
    if pr == 3: return (sW, (QS+2)*ST + hf*1024)
    return (sW2, XL + hf*1024)
NSTG = 10
def qload(c, QO=QO):
    pr, hf = divmod(c, 2); qt, u = divmod(pr, 3)
    e("s_add_u32 s%d, s%d, %d" % (sTq, sHn, 6144*qt + 3072*hf + 128*u if OPT['ql'] else OOB))
    if c < NSTG:
        sg, im = qlds(c)
        e("s_add_u32 m0, s%d, %d" % (sg, im)); e("s_nop 0")
        e("buffer_load_dwordx4 v%d, s[%d:%d], s%d offen%s lds" % (QO, SQ, SQ+3, sTq, POL[OPT['qp']]))
    else:
        e("buffer_load_dwordx4 %s, v%d, s[%d:%d], s%d offen%s" % (vr(4*(c-NSTG), 4), QO, SQ, SQ+3, sTq, POL[OPT['qp']]))
    return vm.issue()
def ostore(ps, k, d, so, oo):
    qt, dp = divmod(k, 2)
    e("s_add_u32 s%d, s%d, %d" % (sT2, so, 6144*qt))
    e("buffer_store_dwordx4 %s, v%d, s[%d:%d], s%d offen offset:%d%s" % (vr(d, 4), oo, SO, SO+3, sT2, 128*ps+(3072 if OPT['fl'] else 64)*dp, POL[OPT['op']])); vm.issue()
HOLD = [216, 220, 224, X, X+4, X+8]
def Dreg(ps, k): return (OD + 4*k) if ps == 2 else HOLD[k]
def conv(ps, dt, pkm=0):
    ops = []
    for qt in range(3):
        o = O + 16*qt + 4*dt; d = Dreg(ps, 2*qt + dt//2) + 2*(dt & 1)
        if pkm: ops += [(4, "v_pk_mul_f32 %s, %s, %s op_sel_hi:[1,0]" % (vr(o+2*i, 2), vr(o+2*i, 2), vr(L+2*qt, 2))) for i in range(2)]
        else: ops += [(4, "v_mul_f32 v%d, v%d, v%d" % (o+i, o+i, L+2*qt)) for i in range(4)]
        ops += [(4, "v_cvt_pk_bf16_f32 v%d, v%d, v%d" % (d+i, o+2*i, o+2*i+1)) for i in range(2)]
    return ops
def cv(ps): return conv(ps, 0) + conv(ps, 1) + conv(ps, 2) + conv(ps, 3)
def cvs(ps, k): return cv(ps)[(9*k+1)//2:(9*k+10)//2]
def shuf(ps, qt, t0, t1):
    a, b = Dreg(ps, 2*qt), Dreg(ps, 2*qt+1)
    ops = ["v_permlane16_swap_b32 v%d, v%d" % (d+i, d+2+i) for d in (a, b) for i in range(2)]
    for h in (0, 2):
        ops += ["v_mov_b32 v%d, v%d" % (t0, a+h), "v_mov_b32 v%d, v%d" % (t1, a+h+1)]
        ops += ["v_mov_b32_dpp v%d, v%d row_ror:8 row_mask:0xf bank_mask:0xc" % (a+h+i, b+h+i) for i in range(2)]
        ops += ["v_mov_b32_dpp v%d, v%d row_ror:8 row_mask:0xf bank_mask:0x3" % (b+h+i, (t0, t1)[i]) for i in range(2)]
    return [(4, x) for x in ops]
def swaps(d):
    e("v_permlane16_swap_b32 v%d, v%d" % (d, d+2)); e("v_permlane16_swap_b32 v%d, v%d" % (d+1, d+3))
def next_head():
    e("s_mul_i32 s%d, s%d, 147456" % (sHn, sHd)); e("s_cmp_ge_u32 s%d, %d" % (sHd, 0 if OPT['nomem'] else 256*OPT['nheads']))
    e("s_cselect_b32 s%d, 0x%x, s%d" % (sHn, OOB, sHn)); e("s_add_u32 s%d, s%d, 256" % (sHd, sHd))
e("s_cmp_ge_u32 s2, 256"); e("s_cbranch_scc1 L_end")
e("s_load_dwordx4 s[4:7], s[0:1], 0"); e("s_load_dwordx4 s[36:39], s[0:1], 16")
e("v_lshrrev_b32 v2, 6, v0"); e("v_and_b32 v1, 63, v0"); e("v_readfirstlane_b32 s40, v2")
e("v_and_b32 v3, 15, v1"); e("v_lshrrev_b32 v4, 4, v1")
e("v_mul_u32_u24 v5, 384, v3"); e("v_lshrrev_b32 v6, 1, v3"); e("v_xor_b32 v6, v6, v4")
e("v_lshl_add_u32 v%d, v6, 4, v5" % KA); e("v_xor_b32 v6, 4, v6"); e("v_lshl_add_u32 v%d, v6, 4, v5" % (KA+1))
e("v_mul_u32_u24 v5, 24, v2"); e("v_lshrrev_b32 v6, 3, v1"); e("v_add_u32 v5, v5, v6"); e("v_mul_u32_u24 v5, 384, v5")
e("v_lshlrev_b32 v6, 1, v4"); e("v_and_b32 v7, 7, v1"); e("v_xor_b32 v6, v6, v7"); e("v_lshl_add_u32 v%d, v6, 4, v5" % DV)
e("s_mul_i32 s%d, s40, 3072" % sW); e("s_lshl_b32 s%d, s40, 2" % sWv); e("s_lshl_b32 s%d, s40, 11" % sW2)
if OPT['prio']:
    e("s_cmp_ge_u32 s40, 4"); e("s_cbranch_scc0 L_np"); e("s_setprio 1"); lab("L_np")
lane_consts(); lane_consts2()
e("s_waitcnt lgkmcnt(0)")
for (d, src) in ((SQ, 4), (SK, 6), (SV, 36), (SO, 38)):
    e("s_mov_b32 s%d, s%d" % (d, src)); e("s_and_b32 s%d, s%d, 0xffff" % (d+1, src+1))
    e("s_mov_b32 s%d, %d" % (d+2, NB)); e("s_mov_b32 s%d, 0x00020000" % (d+3))
e("s_mov_b32 s%d, 0x%x" % (sC, f2u(C))); e("s_mov_b32 s%d, 0x%x" % (sC2, f2u(2048.0))); e("s_mov_b32 s%d, 0x%x" % (sC2+1, f2u(C))); e("s_mov_b32 s%d, 0x%x" % (sTh, f2u(OPT['T'])))
e("s_mov_b32 s%d, s2" % sHd); e("s_mov_b32 s%d, 0" % sIt); e("s_mov_b32 s%d, 0x%x" % (sO, OOB))
next_head()
D1 = [('O', 1, 3), ('O', 1, 4), ('O', 1, 5)] + [('O', 2, k) for k in range(6)]
EV1 = {0: [('T', 1)], 1: [('T', 2)], 2: [('T', 3)], 4: [('T', 4)], 8: [('T', 5)], 9: [('T', 6)], 12: [('T', 7)], 16: [('T', 8)], 17: [('T', 9)], 20: [('T', 10)]}
for i, uu in enumerate({0: (5, 6, 7, 10, 11, 13, 14, 15, 18), 1: (3, 5, 6, 7, 10, 11, 13, 14, 15)}[OPT['sched'] % 2]):
    EV1.setdefault(uu, []).append(D1[(3+i) % 9])
EV2 = {0: [('T', 11)], 2: [('Q', 8)], 4: [('Q', 9)], 6: [('T', 12)]}
for i, c in enumerate((0, 2, 4, 1, 3, 5, 6, 7)): EV2.setdefault(12 + 2*i, []).append(('Q', c))
for i, pp in enumerate((14, 15, 17, 19, 21, 22)): EV2.setdefault(pp, []).append(('O', 0, i))
for i in range(8): EV2.setdefault(OPT['qd0'] + i, []).append(('Q', NSTG + i))
for i in range(3): EV2.setdefault(31 + 2*i, []).append(('O', 1, i))
if OPT['ns']:
    EV1 = {0: [('T', 2)], 1: [('T', 3)], 2: [('T', 4)], 3: [('T', 5)], 4: [('T', 6)], 8: [('T', 7)], 12: [('T', 8)], 16: [('T', 9)], 20: [('T', 10)]}
    for i, uu in enumerate({0: (5, 6, 7, 9, 10, 11, 13, 14, 15), 1: (6, 9, 10, 11, 13, 14, 15, 17, 18), 2: (9, 10, 11, 13, 14, 15, 17, 18, 19)}[OPT['sched'] % 3]):
        EV1.setdefault(uu, []).append(D1[(3+i) % 9])
    EV2 = {0: [('T', 11)], 2: [('Q', 8)], 4: [('Q', 9)], 6: [('T', 12)], 12: [('T', 13)], 18: [('Q', 0)], 19: [('Q', 2)], 20: [('Q', 4)],
           24: [('Q', 1), ('Q', 3)], 25: [('Q', 10), ('Q', 11)], 26: [('Q', 12), ('Q', 13)], 27: [('Q', 14), ('Q', 15)], 28: [('Q', 16), ('Q', 17)], 29: [('Q', 5)], 30: [('Q', 6), ('Q', 7)]}
    for i, pp in enumerate((14, 15, 16, 17, 21, 22)): EV2.setdefault(pp, []).append(('O', 0, i))
    for i in range(3): EV2.setdefault(31 + 2*i, []).append(('O', 1, i))
if OPT['sched'] >= 3:
    EV1 = {0: [('T', 2)], 2: [('T', 3)], 4: [('T', 4)], 8: [('T', 5)], 12: [('T', 6)], 16: [('T', 7)], 18: [('T', 8)], 20: [('T', 9)], 22: [('T', 10)]}
    for i, uu in enumerate((5, 6, 7, 9, 10, 11, 13, 14, 15)): EV1.setdefault(uu, []).append(D1[(3+i) % 9])
    EV2 = {0: [('T', 11)], 3: [('Q', 8)], 4: [('Q', 9)], 6: [('T', 12)], 12: [('T', 13)], 18: [('Q', 0)], 19: [('Q', 2)], 20: [('Q', 4)]}
    QP = {3: (24, 25, 25, 26, 27, 27, 28, 29, 30, 30, 31, 31, 32), 4: (24, 25, 26, 27, 28, 29, 30, 30, 31, 31, 32, 32, 33), 5: (24, 24, 25, 25, 26, 26, 27, 27, 28, 28, 29, 30, 30)}[OPT['sched']]
    for pp, c in zip(QP, (1, 3, 10, 11, 5, 12, 13, 14, 15, 16, 17, 6, 7)): EV2.setdefault(pp, []).append(('Q', c))
    for i, pp in enumerate((14, 15, 16, 21, 22, 23)): EV2.setdefault(pp, []).append(('O', 0, i))
    for i, pp in enumerate((33, 34, 35)): EV2.setdefault(pp, []).append(('O', 1, i))
if M3:
    EV1 = {0: [('T', 2)], 2: [('T', 3)], 4: [('T', 4)], 8: [('T', 5)], 12: [('T', 6)], 16: [('T', 7)], 18: [('T', 8)],
           19: [('Q', 0)], 20: [('Q', 2), ('Q', 4)], 21: [('Q', 1), ('Q', 3), ('Q', 5)]}
    for i, uu in enumerate((5, 6, 7, 9, 10, 11, 13, 14, 15)): EV1.setdefault(uu, []).append(D1[(3+i) % 9])
    EV2 = {2: [('Q', 6)], 3: [('Q', 7)], 4: [('Q', 8)], 5: [('Q', 9)], 6: [('T', 9)], 12: [('T', 10)], 18: [('T', 11)], 24: [('T', 12)], 30: [('T', 13)]}
    if OPT['qv'] == 1:
        EV1[21] = []; EV1[20] = [('Q', 2)]; EV1[21] = [('Q', 4)]
        EV2.update({2: [('Q', 1)], 3: [('Q', 3)], 4: [('Q', 5)], 5: [('Q', 6)], 8: [('Q', 7)], 9: [('Q', 8)], 10: [('Q', 9)]})
    for i in range(8): EV2.setdefault(25 + i//2, []).append(('Q', NSTG + i))
    for i, pp in enumerate((14, 15, 16, 20, 21, 22)): EV2.setdefault(pp, []).append(('O', 0, i))
    for i, pp in enumerate((32, 33, 34)): EV2.setdefault(pp, []).append(('O', 1, i))
def event(ev, ph1):
    global qid
    if ev[0] == 'T': tid[ev[1]] = dma(ev[1])
    elif ev[0] == 'Q': qid = qload(ev[1], QO1 if ph1 else QO)
    elif ph1: ostore(ev[1], ev[2], (OD + 4*ev[2]) if ev[1] == 2 else (OD2 + 4*(ev[2]-3)), sOp, OO1)
    else: ostore(ev[1], ev[2], HOLD[ev[2]], sO, OO)
tline(sIt, 0)
dma(12)
for c in range(18): qload(c)
if OPT['ns']: dma(13)
e("s_waitcnt vmcnt(%d)" % (21 if OPT['pro'] else 0))
e("s_barrier")
e("s_branch L_entry")
out.append(".p2align 6")
lab("L_head")
tline(sIt, 0)
stamp()
if OPT['stamp']: e("s_memrealtime s[96:97]")
e("s_mov_b64 s[%d:%d], 0" % (sMk, sMk+1))
vm = Cnt(); tid = {}
if OPT['pro'] and not M3: tid[1] = vm.issue()
if M3:
    tid[1] = vm.issue()
    for i in range(3): vm.issue()
lg = Cnt()
cp = OPT['compute']
LA1, LA2 = OPT['la1'], OPT['la2']
pend = {}
for n in range(LA1): pend[n] = lg.issue()
lg.done = lg.n
def spread(ops, slots, fn_slot, start=0):
    tot = sum(c for c, _ in ops); done = 0; oi = 0
    for k in range(slots):
        fn_slot(k)
        if k >= start:
            target = tot * (k - start + 1) / (slots - start)
            while oi < len(ops) and done + ops[oi][0]/2 <= target:
                emit_op(ops[oi]); done += ops[oi][0]; oi += 1
    while oi < len(ops): emit_op(ops[oi]); oi += 1
U0 = [(4, 'v_mov_b32 v%d, v%d' % (OD2+i, X+i)) for i in range(12)] + shuf(2, 0, T0, T1) + shuf(2, 1, T0, T1) + shuf(2, 2, T0, T1)
for u in range(24):
    p = u // 4
    if u % 4 == 0 and p > 0:
        if p+1 not in SP: wait_vm(tid[p+1])
        elif p in SP: wait_vm(tid[p])
        e("s_barrier"); stamp()
        if p in SP and cp:
            for n in range(24*p, 24*p+LA1): pend[n] = kread(n, POOL1[n % 4])
    ops = softmax(u-1) if (u > 0 and cp) else []
    if u == 0 and OPT['e0']: ops = U0
    evs = EV1.get(u, [])
    def slot(k):
        t, qt = divmod(k, 3); n = u*6 + t
        if k % 6 == 3 and k // 6 < len(evs): event(evs[k // 6], True)
        if not (cp and OPT['p1']): return
        if qt == 0: wait_lg(pend[n+1] if (OPT['w2'] and n % 2 == 0) else pend[n])
        kmfma(n, POOL1[n % 4], qt)
        if qt == 0 and n+LA1 < 144 and not ((n+LA1)//24 in SP and n//24 != (n+LA1)//24): pend[n+LA1] = kread(n+LA1, POOL1[(n+LA1) % 4])
    spread(ops, 18, slot, start=(0 if (u == 0 or (u % 4 == 0 and u//4 in SP)) else 6))
wait_vm(tid[7]); e("s_barrier"); stamp()
lab("L_p2")
lane_consts()
pend = {}
NP = len(POOL2)
NCH = 12 if OPT['oc'] else 19
if cp:
    for n in range(LA2): pend[n] = vread(n, POOL2[n % NP])
    o23 = softmax(23)
    for op in o23[:NCH]: emit_op(op)
LAC = 216; ONE = X
def lmf(j):
    return [(8, MF % (vr(LAC+4*qt, 4), vr(ONE, 4), vr(12*j+4*qt, 4), "0" if j == 0 else vr(LAC+4*qt, 4))) for qt in range(3)]
for pj in range(36):
    ps, j = divmod(pj, 12); p = 6 + pj // 6
    if pj % 6 == 0 and p > 6:
        if not (M3 and p >= 8): wait_vm(tid[p+1])
        e("s_barrier"); stamp()
    if M3 and pj % 6 == 5 and p >= 8:
        wait_vm(tid[p+1]); e("s_barrier")
    ops = []; fixed = {}
    def sumchk():
        e("v_add_f32 v%d, v%d, v%d" % (T0, LAC, LAC+4)); e("v_add_f32 v%d, v%d, v%d" % (T0, T0, LAC+8)); e("v_cmp_ngt_f32 vcc, s%d, v%d" % (sC2, T0))
        e("s_andn2_b64 s[46:47], vcc, s[%d:%d]" % (sMk, sMk+1)); e("s_cbranch_scc1 L_slow")
    def okchk():
        e("v_and_b32 v%d, 0x40004000, v%d" % (T0, T2)); e("v_cmp_ne_u32 vcc, 0, v%d" % T0)
        e("s_andn2_b64 s[46:47], vcc, s[%d:%d]" % (sMk, sMk+1)); e("s_cbranch_scc1 L_slow")
    if pj == 0 and cp: ops = o23[NCH:] + ([(12, okchk)] if OPT['oc'] == 1 else []) + ([(4, "v_mov_b32 v%d, 0x3f803f80" % (ONE+i)) for i in range(4)] if OPT['ones'] else [])
    if pj == 1 and not OPT['sh']: ops = [(4, lane_consts2)]
    if pj in (1, 2) and OPT['sh']:
        sv = out; out = []; lane_consts2(); lc = [(4, x.strip()) for x in out]; out = sv
        ops = lc[:13] if pj == 1 else lc[13:]
    if OPT['ones'] and cp:
        if OPT['oc'] == 2:
            for k, jj in {1: ((0, 0), (4, 1), (8, 2)), 2: ((0, 3), (4, 4), (8, 5)), 3: ((0, 6), (4, 7), (8, 8)), 4: ((0, 9), (6, 10)), 5: ((0, 11),)}.get(pj, ()): fixed[k] = lmf(jj)
            if pj == 5: fixed[9] = [(12, sumchk)]
        elif pj == 1: fixed[0] = lmf(0); fixed[6] = lmf(1)
        elif 1 < pj < 11: fixed[0] = lmf(pj)
        if pj == 10 and OPT['oc'] != 2: fixed[6] = lmf(11)
        if pj == (7 if OPT['oc'] == 2 else 11): fixed[2] = [(8, "v_rcp_f32 v%d, v%d" % (L+2*qt, LAC+4*qt)) for qt in range(3)]
    elif pj == 2:
        for qt in range(3): ops += [(4, s) for s in xlane("v_add_f32", L+2*qt, T0)] + [(8, "v_rcp_f32 v%d, v%d" % (L+2*qt, L+2*qt))]
    if j == 11:
        for k in range(6): fixed[6+k] = cvs(ps, k)
    if j == 0 and ps > 0:
        for k in range(10): fixed[k] = cvs(ps-1, 6+k)
        fixed[11] = shuf(ps-1, 0, T0, T1)[:4]
    if OPT['sh']:
        if j == 1 and ps > 0: ops = shuf(ps-1, 0, T0, T1)[4:]
        if 2 <= j <= 5 and ps > 0: ops = shuf(ps-1, 1 + (j-2)//2, T0, T1)[8*(j % 2):8*(j % 2)+8]
    else:
        if j == 1 and ps > 0: ops = shuf(ps-1, 0, T0, T1)[4:] + shuf(ps-1, 1, T0, T1)
        if j == 2 and ps > 0: ops = shuf(ps-1, 2, T0, T1)
    evs = EV2.get(pj, [])
    def slot(k):
        dt, qt = divmod(k, 3); n = pj*4 + dt
        if k % 6 == 3 and k // 6 < len(evs): event(evs[k // 6], False)
        if cp and OPT['p2']:
            if qt == 0: wait_lg(pend[n+1] if (OPT['w2'] and n % 2 == 0) else pend[n])
            vmfma(n, POOL2[n % NP], qt)
            if qt == 0 and n+LA2 < 144: pend[n+LA2] = vread(n+LA2, POOL2[(n+LA2) % NP])
        for op in fixed.get(k, []): emit_op(op)
    spread(ops, 12, slot, start=0)
    if j == 11 and ps < 2: stamp()
stamp()
lab("L_entry")
lg = Cnt()
if cp:
    for n in range(LA1): kread(n, POOL1[n])
e("s_mov_b32 s%d, s%d" % (sH, sHn)); e("s_mov_b32 s%d, s%d" % (sOp, sO))
for op in cv(2)[27:36]: emit_op(op)
for i in range(3): e("v_mov_b32 v%d, v%d" % (DK1+i, DK+i))
e("v_mov_b32 v%d, v%d" % (OO1, OO)); e("v_mov_b32 v%d, v%d" % (QO1, QO))
e("v_and_b32 v%d, 0x37, v%d" % (T0, LN)); e("v_lshl_add_u32 v%d, v%d, 4, s%d" % (T0, T0, sW)); e("v_bfe_u32 v%d, v%d, 3, 1" % (T1, LN))
e("v_lshl_add_u32 v%d, v%d, 10, v%d" % (T2, T1, T0)); e("v_mul_u32_u24 v%d, 0x%x, v%d" % (T1, ST, T1)); e("v_add_u32 v%d, v%d, v%d" % (T0, T0, T1))
e("v_add_u32 v%d, 0x%x, v%d" % (T2, (QS+2)*ST, T2)); e("v_add_u32 v%d, 0x%x, v%d" % (T0, QS*ST, T0))
e("s_sub_u32 s%d, s%d, s%d" % (sT, sW2, sW)); e("s_add_u32 s%d, s%d, %d" % (sT, sT, XL - (QS+2)*ST)); e("v_add_u32 v%d, s%d, v%d" % (T1, sT, T2))
for op in conv(2, 2, 1) + conv(2, 3, 1): emit_op(op)
e("s_mov_b32 s%d, s%d" % (sO, sHn if OPT['st'] else sO))
next_head()
stamp()
wait_vm(qid)
stamp()
for c in range(NSTG):
    pr, hf = divmod(c, 2)
    a, im = (T0, pr*1024) if pr < 3 else ((T2, 0) if pr == 3 else (T1, 0))
    e("ds_read_b128 %s, v%d offset:%d" % (vr(Q+4*c, 4), a, im + 128*hf))
if not OPT['e0']:
    for i in range(6): e("v_pk_mov_b32 %s, %s, %s op_sel:[0,1]" % (vr(OD2+2*i, 2), vr(X+2*i, 2), vr(X+2*i, 2)))
for pr in range(4):
    A, B, FA, FB_ = 8*pr, 8*pr+4, Q+4*NSTG+8*pr, Q+4*NSTG+8*pr+4
    for i in range(4): e("v_pk_mov_b32 %s, %s, %s op_sel:[0,1]" % (vr(FA+2*i, 2), vr(A+2*i, 2), vr(A+2*i, 2)))
    for i in range(4): e("v_mov_b32_dpp v%d, v%d row_ror:8 row_mask:0xf bank_mask:0xc" % (FA+i, B+i))
    for i in range(4): e("v_mov_b32_dpp v%d, v%d row_ror:8 row_mask:0xf bank_mask:0x3" % (FB_+i, A+i))
for qt in range(0 if OPT['e0'] else 3):
    for op in shuf(2, qt, X, X+1): emit_op(op)
e("s_waitcnt lgkmcnt(0)")
e("s_barrier")
if OPT['stamp']:
    stamp()
    e("s_memrealtime s[%d:%d]" % (50+2*nst[0], 51+2*nst[0])); e("s_waitcnt lgkmcnt(0)")
    e("s_sub_u32 s%d, s%d, s96" % (50+2*nst[0], 50+2*nst[0])); e("s_add_u32 s%d, s%d, s50" % (50+2*nst[0], 50+2*nst[0])); nst[0] += 1
    e("s_cmp_lg_u32 s%d, 2" % sIt); e("s_cbranch_scc1 L_nost"); e("s_cmp_lg_u32 s2, %d" % (OPT['stamp']-1)); e("s_cbranch_scc1 L_nost")
    e("s_and_b32 s41, s40, 3"); e("s_cmp_lg_u32 s41, 0"); e("s_cbranch_scc1 L_nost")
    e("s_load_dwordx2 s[44:45], s[0:1], 32"); e("s_waitcnt lgkmcnt(0)"); e("s_mov_b32 s46, 256"); e("s_mov_b32 s47, 0x00020000")
    e("s_and_b32 s45, s45, 0xffff"); e("s_lshl_b32 s41, s40, 5"); e("v_mov_b32 v%d, s41" % T1)
    for i in range(nst[0]):
        e("s_sub_u32 s41, s%d, s50" % (50+2*i)); e("v_mov_b32 v%d, s41" % T0)
        e("buffer_store_dword v%d, v%d, s[44:47], 0 offen offset:%d" % (T0, T1, 4*i)); e("s_waitcnt vmcnt(0)")
    lab("L_nost")
e("s_add_u32 s%d, s%d, 1" % (sIt, sIt)); e("s_cmp_le_u32 s%d, %d" % (sIt, OPT['nheads'])); e("s_cbranch_scc1 L_head")
tline(sIt, 0)
for op in (U0 if OPT['e0'] else []): emit_op(op)
for ev in D1: event(ev, True)
if OPT['tl']: e("s_waitcnt vmcnt(0)"); tline(sIt, 1)
lab("L_end")
e("s_endpgm")
if OPT['oc'] and cp: slowpath()
for s in (slow if cp else []): (out.append(s) if s.endswith(':') else e(s))
hdr = open('cdna_kernels/%s.s.ref' % NAME).read().split('\n')
hdr = [l for l in hdr if l.startswith(';') and '@launch' not in l]
txt = '\n'.join(hdr) + "\n; @launch grid=(256,1,1) block=(512,1,1) lds=163840\n"
txt += '.amdgcn_target "amdgcn-amd-amdhsa--gfx950"\n.text\n.globl %s_kernel\n.p2align 8\n.type %s_kernel,@function\n%s_kernel:\n' % (NAME, NAME, NAME)
txt += '\n'.join(out) + "\n"
txt += """.section .rodata,"a"
.p2align 6
.amdhsa_kernel %s_kernel
  .amdhsa_next_free_vgpr 256
  .amdhsa_next_free_sgpr 100
  .amdhsa_accum_offset 256
  .amdhsa_group_segment_fixed_size 0
  .amdhsa_kernarg_size 48
  .amdhsa_user_sgpr_count 2
  .amdhsa_user_sgpr_kernarg_segment_ptr 1
  .amdhsa_system_sgpr_workgroup_id_x 1
.end_amdhsa_kernel
""" % NAME
open(sys.argv[1], 'w').write(txt)
```

```python
import sys, struct, math
OPT = dict(compute=1, T=8.0, nheads=4, dmapos=1, kvp=1, qp=1, op=0, la1=3, la2=3, prio=0, st=1, p1=1, p2=1, nomem=0, ql=1, stamp=0, sched=5, defer=1, qd=2, qd0=27, fl=1, pk=0, tl=0, ones=1, w2=1, ns=1, sp3=0, m3=0, qv=0, sh=1, oc=2, e0=1, pro=1, vmap=1, dq=1, tail=1)
for a in sys.argv[2:]:
    k, v = a.split('='); OPT[k] = float(v) if '.' in v else int(v)
POL = ['', ' nt', ' sc1', ' sc0 sc1', ' sc1 nt', ' sc0 sc1 nt']
NAME = "standalone__mha_softmax__near_ridge"
NB = 32*32*384*192*2
ST = 24576
OOB = 0x10000000
def f2u(x): return struct.unpack('<I', struct.pack('<f', x))[0]
C = 192**-0.5 * math.log2(math.e)
X = 144; Q = 156; O = 156; VA = 204; DK = 208; QO = 211; OO = 212; LN = 213; TT = 214
DK1 = 132; OO1 = 135; OD = 96; OD2 = 120
FB = 228; MC = 245; L = 244; KA = 250; DV = 252; T0 = 253; T1 = 254; T2 = 255
POOL1 = [FB+4*i for i in range(4)]
POOL2 = POOL1
SQ, SK, SV, SO = 8, 12, 16, 20
sH, sHn, sO, sIt, sC, sW, sT, sWv, sTh, sT2, sHd, sOp, sTq, sW2 = 24, 25, 26, 28, 29, 30, 31, 32, 33, 34, 35, 27, 42, 43
sC2 = 48
M3 = OPT['m3']
QS = 3 if M3 else 1 + OPT['ns']
QO1 = 136
SP = ({2, 3} if OPT['sp3'] else {2}) if OPT['ns'] else {1}
if M3 or OPT['pro']: SP = SP | {1}
VM = (0, 2, 3, 4, 1, 5)
OPT_Q = {2: (1, 7), 3: (1, 5, 9)}[OPT['qd']]
out = []
def e(s): out.append("    " + s)
def lab(s): out.append(s + ":")
def vr(b, n): return "v[%d:%d]" % (b, b+n-1)
class Cnt:
    def __init__(s): s.n = 0; s.done = 0
    def issue(s): s.n += 1; return s.n
lg = Cnt(); vm = Cnt()
def wait_lg(i):
    if i <= lg.done: return
    n = lg.n - i; assert n <= 15, n
    e("s_waitcnt lgkmcnt(%d)" % n); lg.done = i
def wait_vm(i):
    if i <= vm.done: return
    n = vm.n - i; assert n <= 63, n
    e("s_waitcnt vmcnt(%d)" % n); vm.done = i
nst = [0]
def stamp():
    if OPT['stamp']:
        e("s_memtime s[%d:%d]" % (50+2*nst[0], 51+2*nst[0])); nst[0] += 1
ntl = [0]
def tline(idx_sgpr, add):
    if not OPT['tl']: return
    ntl[0] += 1; lb = "L_tl%d" % ntl[0]
    e("s_and_b32 s41, s2, 63"); e("s_or_b32 s41, s41, s40"); e("s_cmp_lg_u32 s41, 0"); e("s_cbranch_scc1 " + lb)
    e("s_memrealtime s[50:51]"); e("s_load_dwordx2 s[44:45], s[0:1], 32"); e("s_waitcnt lgkmcnt(0)"); e("s_mov_b32 s46, 256"); e("s_mov_b32 s47, 0x00020000")
    e("s_and_b32 s45, s45, 0xffff"); e("s_lshr_b32 s41, s2, 6"); e("s_lshl_b32 s41, s41, 3"); e("s_add_u32 s41, s41, s%d" % idx_sgpr); e("s_add_u32 s41, s41, %d" % add)
    e("s_lshl_b32 s41, s41, 2"); e("v_mov_b32 v%d, s41" % T1); e("v_mov_b32 v%d, s50" % T0)
    e("buffer_store_dword v%d, v%d, s[44:47], 0 offen" % (T0, T1)); e("s_waitcnt vmcnt(0)"); lab(lb)
def Sreg(j, kt, qt): return (12*j if kt == 0 else X) + 4*qt
def dma(t):
    slot = (t-6) % 3 if (M3 and 6 <= t < 12) else t % 6
    if OPT['vmap'] and 6 <= t < 12: slot = VM[t-6]
    e("s_add_u32 m0, s%d, %d" % (sW, slot*ST))
    if 6 <= t < 12:
        i = t - 6
        for ii in range(3):
            e("s_add_u32 s%d, s%d, %d" % (sT, sH, (i % 2)*192*384 + (i//2)*128 + 2048*ii))
            e("buffer_load_dwordx4 v%d, s[%d:%d], s%d offen offset:%d%s lds" % (DV, SV, SV+3, sT, 1024*ii, POL[OPT['kvp']])); r = vm.issue()
    else:
        e("s_add_u32 s%d, s%d, %d" % (sT, sHn if t >= 12 else sH, (t % 12)*ST))
        for ii in range(3):
            e("buffer_load_dwordx4 v%d, s[%d:%d], s%d offen offset:%d%s lds" % ((DK if t >= 12 else DK1)+ii, SK, SK+3, sT, 1024*ii, POL[OPT['kvp']])); r = vm.issue()
    return r
def kread(n, b):
    u, t = divmod(n, 6); j, kt = divmod(u, 2); s = j // 2
    if n % 48 == 0 and n > 0:
        for i in range(2): e("v_add_u32 v%d, 0xc000, v%d" % (KA+i, KA+i))
    e("ds_read_b128 %s, v%d offset:%d" % (vr(b, 4), KA+(t & 1), (s % 2)*ST + (32*(j % 2)+16*kt)*384 + 128*(t >> 1)))
    r = lg.issue()
    if n == 143:
        for i in range(2): e("v_subrev_u32 v%d, 0x18000, v%d" % (KA+i, KA+i))
    return r
def vread(n, b):
    pj, dt = divmod(n, 4); ps, j = divmod(pj, 12); s = ps*2 + j // 6
    if OPT['vmap']:
        if n % 24 == 0 and s > 0 and VM[s]//2 != VM[s-1]//2:
            dl = VM[s]//2 - VM[s-1]//2
            for i in range(4): e("%s v%d, 0x%x, v%d" % ("v_subrev_u32" if dl < 0 else "v_add_u32", VA+i, 0xc000*abs(dl), VA+i))
        s = VM[s]
    elif M3:
        if n % 24 == 0 and s in (2, 3, 5):
            for i in range(4): e("%s v%d, 0xc000, v%d" % ("v_subrev_u32" if s == 3 else "v_add_u32", VA+i, VA+i))
        s = s % 3
    elif n % 48 == 0 and n > 0:
        for i in range(4): e("v_add_u32 v%d, 0xc000, v%d" % (VA+i, VA+i))
    for i2 in range(2):
        e("ds_read_b64_tr_b16 %s, v%d offset:%d" % (vr(b+2*i2, 2), VA+dt, (s % 2)*ST + (32*(j % 6)+16*i2)*128))
        r = lg.issue()
    return r
MF = "v_mfma_f32_16x16x32_bf16 %s, %s, %s, %s"
def kmfma(n, b, qt):
    u, t = divmod(n, 6); j, kt = divmod(u, 2); s = Sreg(j, kt, qt)
    e(MF % (vr(s, 4), vr(b, 4), vr(Q+24*qt+4*t, 4), "0" if t == 0 else vr(s, 4)))
def vmfma(n, b, qt):
    pj, dt = divmod(n, 4); ps, j = divmod(pj, 12); o = O + 16*qt + 4*dt
    e(MF % (vr(o, 4), vr(b, 4), vr(12*j+4*qt, 4), "0" if j == 0 else vr(o, 4)))
slow = []
def xlane(op, a, b):
    r = []
    for sw in ("v_permlane16_swap_b32", "v_permlane32_swap_b32"):
        r += ["v_mov_b32 v%d, v%d" % (b, a), "s_nop 1", "%s v%d, v%d" % (sw, a, b), "s_nop 1", "%s v%d, v%d, v%d" % (op, a, a, b)]
    return r
def softmax(u):
    j, kt = divmod(u, 2)
    R = [Sreg(j, kt, qt) for qt in range(3)]
    ops = []
    if u == 0:
        for qt in range(3):
            r = R[qt]
            ops += [(4, "v_max3_f32 v%d, v%d, v%d, v%d" % (T0, r, r+1, r+2)), (4, "v_max_f32 v%d, v%d, v%d" % (T0, T0, r+3))]
            ops += [(4, s) for s in xlane("v_max_f32", T0, T1)]
            ops += [(4, "v_mul_f32 v%d, s%d, v%d" % (MC+2*qt, sC, T0)), (4, ("v_add_f32 v%d, s%d, v%d" % (MC+2*qt, sTh, MC+2*qt)) if OPT['oc'] else ("v_mov_b32 v%d, 0" % (L+2*qt)))]
    for qt in range(3):
        if OPT['pk']:
            for i in (0, 2): ops.append((4, "v_pk_fma_f32 %s, %s, s[%d:%d], %s op_sel:[0,0,1] op_sel_hi:[1,1,1] neg_lo:[0,0,1] neg_hi:[0,0,1]" % (vr(R[qt]+i, 2), vr(R[qt]+i, 2), sC2, sC2+1, vr(L+2*qt, 2))))
        else:
            for i in range(4): ops.append((4, "v_fma_f32 v%d, v%d, s%d, -v%d" % (R[qt]+i, R[qt]+i, sC, MC+2*qt)))
    if u > 0 and not OPT['oc']:
        a = [R[qt]+i for qt in range(3) for i in range(4)]
        ops += [(4, "v_max3_f32 v%d, v%d, v%d, v%d" % (T0, a[0], a[1], a[2])), (4, "v_max3_f32 v%d, v%d, v%d, v%d" % (T1, a[3], a[4], a[5])),
                (4, "v_max3_f32 v%d, v%d, v%d, v%d" % (T0, T0, a[6], a[7])), (4, "v_max3_f32 v%d, v%d, v%d, v%d" % (T1, T1, a[8], a[9])),
                (4, "v_max3_f32 v%d, v%d, v%d, v%d" % (T0, T0, a[10], a[11])), (4, "v_max_f32 v%d, v%d, v%d" % (T0, T0, T1))]
        def chk():
            e("v_cmp_lt_f32 vcc, s%d, v%d" % (sTh, T0)); e("s_cbranch_vccnz L_slow%d" % u); lab("L_back%d" % u)
        ops.append((8, chk))
        blk = ["L_slow%d:" % u]
        for qt in range(3):
            r = R[qt]
            blk += ["v_max3_f32 v%d, v%d, v%d, v%d" % (T0, r, r+1, r+2), "v_max3_f32 v%d, v%d, v%d, 0" % (T0, T0, r+3)]
            blk += xlane("v_max_f32", T0, T1)
            blk += ["v_add_f32 v%d, v%d, v%d" % (MC+2*qt, MC+2*qt, T0)]
            blk += ["v_sub_f32 v%d, v%d, v%d" % (r+i, r+i, T0) for i in range(4)]
            blk += ["v_exp_f32 v%d, -v%d" % (T0, T0), "s_nop 0", "v_mul_f32 v%d, v%d, v%d" % (L+2*qt, L+2*qt, T0)]
            regs = [12*jj+4*qt+i for jj in range(j) for i in range(4)] + ([12*j+4*qt, 12*j+4*qt+1] if kt else [])
            for p in regs:
                blk += ["v_lshlrev_b32 v%d, 16, v%d" % (T1, p), "v_and_b32 v%d, 0xffff0000, v%d" % (T2, p),
                        "v_mul_f32 v%d, v%d, v%d" % (T1, T1, T0), "v_mul_f32 v%d, v%d, v%d" % (T2, T2, T0),
                        "v_cvt_pk_bf16_f32 v%d, v%d, v%d" % (p, T1, T2)]
        blk += ["s_branch L_back%d" % u]
        slow.extend(blk)
    seq = [(qt, i) for qt in range(3) for i in range(4)]
    for n in range(12+2):
        if n < 12:
            qt, i = seq[n]; ops.append((8, "v_exp_f32 v%d, v%d" % (R[qt]+i, R[qt]+i)))
        if n >= 2:
            qt, i = seq[n-2]
            if not OPT['ones']: ops.append((4, "v_add_f32 v%d, v%d, v%d" % (L+2*qt, L+2*qt, R[qt]+i)))
            if i & 1: ops.append((4, "v_cvt_pk_bf16_f32 v%d, v%d, v%d" % (12*j+4*qt+2*kt+i//2, R[qt]+i-1, R[qt]+i)))
    if OPT['oc'] == 1 and chk_on:
        idx = [i for i, o in enumerate(ops) if o[1].startswith("v_cvt_pk")]
        for qt in (2, 1, 0):
            pr = 12*j+4*qt+2*kt
            ops.insert(min(idx[2*qt+1]+2, len(ops)), (4, "v_or3_b32 v%d, v%d, v%d, %s" % (T2, pr, pr+1, "0" if (u == 0 and qt == 0) else "v%d" % T2)))
    return ops
chk_on = True
sMk = 44
def slowpath():
    global chk_on
    chk_on = False
    lab("L_slow")
    e("s_waitcnt vmcnt(0) lgkmcnt(0)"); e("s_mov_b64 s[%d:%d], -1" % (sMk, sMk+1)); e("s_nop 7"); e("s_nop 7")
    e("v_mbcnt_lo_u32_b32 v%d, -1, 0" % T0); e("v_mbcnt_hi_u32_b32 v%d, -1, v%d" % (T0, T0))
    e("v_lshrrev_b32 v%d, 4, v%d" % (T1, T0)); e("v_and_b32 v%d, 15, v%d" % (T0, T0)); e("v_mul_u32_u24 v%d, 384, v%d" % (T0, T0))
    e("v_lshl_add_u32 v%d, v%d, 4, v%d" % (T2, T1, T0))
    e("s_mul_i32 s%d, s%d, 6" % (sT, sW)); e("s_add_u32 s%d, s%d, s%d" % (sT, sT, sH))
    for qt in range(3):
        for t in range(6): e("buffer_load_dwordx4 %s, v%d, s[%d:%d], s%d offen offset:%d" % (vr(Q+24*qt+4*t, 4), T2, SQ, SQ+3, sT, 64*t))
        e("s_add_u32 s%d, s%d, 6144" % (sT, sT))
    def unit(R):
        for h in range(2):
            for t in range(3): e("buffer_load_dwordx4 %s, v%d, s[%d:%d], s%d offen offset:%d" % (vr(FB+4*t, 4), T2, SK, SK+3, sT, 64*(3*h+t)))
            e("s_waitcnt vmcnt(0)")
            for t in range(3):
                for qt in range(3): e(MF % (vr(R[qt], 4), vr(FB+4*t, 4), vr(Q+24*qt+4*(3*h+t), 4), "0" if 3*h+t == 0 else vr(R[qt], 4)))
            e("s_nop 7"); e("s_nop 7"); e("s_nop 7")
        e("s_add_u32 s%d, s%d, 6144" % (sT, sT))
    for qt in range(3): e("v_mov_b32 v%d, 0xff800000" % (MC+2*qt))
    e("s_mov_b32 s%d, s%d" % (sT, sH)); e("s_mov_b32 s%d, 0" % sT2)
    lab("L_slow_a")
    unit([X+4*qt for qt in range(3)])
    for qt in range(3):
        r = X+4*qt; m = MC+2*qt
        e("v_max3_f32 v%d, v%d, v%d, v%d" % (m, m, r, r+1)); e("v_max3_f32 v%d, v%d, v%d, v%d" % (m, m, r+2, r+3))
    e("s_add_u32 s%d, s%d, 1" % (sT2, sT2)); e("s_cmp_lt_u32 s%d, 24" % sT2); e("s_cbranch_scc1 L_slow_a")
    for qt in range(3):
        for x in xlane("v_max_f32", MC+2*qt, T1): e(x)
        e("v_mul_f32 v%d, s%d, v%d" % (MC+2*qt, sC, MC+2*qt))
    e("s_mov_b32 s%d, s%d" % (sT, sH))
    for u in range(24):
        unit([Sreg(u//2, u % 2, qt) for qt in range(3)])
        if u < 23:
            for op in softmax(u)[-30:]: emit_op(op)
    e("s_branch L_p2")
    chk_on = True
def emit_op(op):
    if callable(op[1]): op[1]()
    else: e(op[1])
def lane_consts():
    e("v_mbcnt_lo_u32_b32 v%d, -1, 0" % LN); e("v_mbcnt_hi_u32_b32 v%d, -1, v%d" % (LN, LN))
    a, b = TT, TT+1
    e("v_lshrrev_b32 v%d, 2, v%d" % (a, LN))
    e("v_bfe_u32 v%d, v%d, 3, 2" % (b, LN))
    e("v_lshlrev_b32 v%d, 5, v%d" % (b, b)); e("v_lshl_add_u32 v%d, v%d, 7, v%d" % (a, a, b))
    e("v_and_b32 v%d, 3, v%d" % (b, LN)); e("v_lshl_add_u32 v%d, v%d, 3, v%d" % (VA, b, a))
    for dt in range(1, 4): e("v_xor_b32 v%d, %d, v%d" % (VA+dt, 32*dt, VA))
def lane_consts2():
    a, b = TT, TT+1
    for ii in range(3):
        e("v_add_u32 v%d, %d, v%d" % (a, 64*ii, LN)); e("v_mul_u32_u24 v%d, 2731, v%d" % (a, a)); e("v_lshrrev_b32 v%d, 17, v%d" % (a, a))
        e("v_add_u32 v%d, s%d, v%d" % (a, sWv, a)); e("v_and_b32 v%d, 7, v%d" % (a, a))
        e("v_xor_b32 v%d, v%d, v%d" % (a, a, LN)); e("v_lshl_add_u32 v%d, v%d, 4, s%d" % (DK+ii, a, sW))
    e("v_and_b32 v%d, 15, v%d" % (a, LN)); e("v_mul_u32_u24 v%d, 384, v%d" % (a, a))
    e("s_mul_i32 s%d, s%d, 6" % (sT2, sW)); e("v_add_u32 v%d, s%d, v%d" % (a, sT2, a))
    if OPT['fl']:
        e("v_bfe_u32 v%d, v%d, 3, 1" % (b, LN)); e("v_mul_u32_u24 v%d, 3008, v%d" % (b, b)); e("v_sub_u32 v%d, v%d, v%d" % (a, a, b))
    e("v_lshrrev_b32 v%d, 4, v%d" % (b, LN)); e("v_lshl_add_u32 v%d, v%d, 4, v%d" % (QO, b, a))
    e("v_bfe_u32 v%d, v%d, 4, 1" % (b, LN)); e("v_lshl_add_u32 v%d, v%d, 5, v%d" % (a, b, a))
    e("v_lshrrev_b32 v%d, 5, v%d" % (b, LN)); e("v_lshl_add_u32 v%d, v%d, 4, v%d" % (OO, b, a))
XL = 6*ST
def qlds(c):
    pr, hf = divmod(c, 2)
    if pr < 3: return (sW, (QS + hf)*ST + pr*1024)
    if pr == 3: return (sW, (QS+2)*ST + hf*1024)
    return (sW2, XL + hf*1024)
NSTG = 10
def qload(c, QO=QO):
    pr, hf = divmod(c, 2); qt, u = divmod(pr, 3)
    e("s_add_u32 s%d, s%d, %d" % (sTq, sHn, 6144*qt + 3072*hf + 128*u if OPT['ql'] else OOB))
    if c < NSTG:
        sg, im = qlds(c)
        e("s_add_u32 m0, s%d, %d" % (sg, im)); e("s_nop 0")
        e("buffer_load_dwordx4 v%d, s[%d:%d], s%d offen%s lds" % (QO, SQ, SQ+3, sTq, POL[OPT['qp']]))
    else:
        e("buffer_load_dwordx4 %s, v%d, s[%d:%d], s%d offen%s" % (vr(4*(c-NSTG), 4), QO, SQ, SQ+3, sTq, POL[OPT['qp']]))
    return vm.issue()
def ostore(ps, k, d, so, oo):
    qt, dp = divmod(k, 2)
    e("s_add_u32 s%d, s%d, %d" % (sT2, so, 6144*qt))
    e("buffer_store_dwordx4 %s, v%d, s[%d:%d], s%d offen offset:%d%s" % (vr(d, 4), oo, SO, SO+3, sT2, 128*ps+(3072 if OPT['fl'] else 64)*dp, POL[OPT['op']])); vm.issue()
HOLD = [216, 220, 224, X, X+4, X+8]
def Dreg(ps, k): return (OD + 4*k) if ps == 2 else HOLD[k]
def conv(ps, dt, pkm=0):
    ops = []
    for qt in range(3):
        o = O + 16*qt + 4*dt; d = Dreg(ps, 2*qt + dt//2) + 2*(dt & 1)
        if pkm: ops += [(4, "v_pk_mul_f32 %s, %s, %s op_sel_hi:[1,0]" % (vr(o+2*i, 2), vr(o+2*i, 2), vr(L+2*qt, 2))) for i in range(2)]
        else: ops += [(4, "v_mul_f32 v%d, v%d, v%d" % (o+i, o+i, L+2*qt)) for i in range(4)]
        ops += [(4, "v_cvt_pk_bf16_f32 v%d, v%d, v%d" % (d+i, o+2*i, o+2*i+1)) for i in range(2)]
    return ops
def cv(ps): return conv(ps, 0) + conv(ps, 1) + conv(ps, 2) + conv(ps, 3)
def cvs(ps, k): return cv(ps)[(9*k+1)//2:(9*k+10)//2]
def shuf(ps, qt, t0, t1):
    a, b = Dreg(ps, 2*qt), Dreg(ps, 2*qt+1)
    ops = ["v_permlane16_swap_b32 v%d, v%d" % (d+i, d+2+i) for d in (a, b) for i in range(2)]
    for h in (0, 2):
        ops += ["v_mov_b32 v%d, v%d" % (t0, a+h), "v_mov_b32 v%d, v%d" % (t1, a+h+1)]
        ops += ["v_mov_b32_dpp v%d, v%d row_ror:8 row_mask:0xf bank_mask:0xc" % (a+h+i, b+h+i) for i in range(2)]
        ops += ["v_mov_b32_dpp v%d, v%d row_ror:8 row_mask:0xf bank_mask:0x3" % (b+h+i, (t0, t1)[i]) for i in range(2)]
    return [(4, x) for x in ops]
def swaps(d):
    e("v_permlane16_swap_b32 v%d, v%d" % (d, d+2)); e("v_permlane16_swap_b32 v%d, v%d" % (d+1, d+3))
def next_head():
    e("s_mul_i32 s%d, s%d, 147456" % (sHn, sHd)); e("s_cmp_ge_u32 s%d, %d" % (sHd, 0 if OPT['nomem'] else 256*OPT['nheads']))
    e("s_cselect_b32 s%d, 0x%x, s%d" % (sHn, OOB, sHn)); e("s_add_u32 s%d, s%d, 256" % (sHd, sHd))
e("s_cmp_ge_u32 s2, 256"); e("s_cbranch_scc1 L_end")
e("s_load_dwordx4 s[4:7], s[0:1], 0"); e("s_load_dwordx4 s[36:39], s[0:1], 16")
e("v_lshrrev_b32 v2, 6, v0"); e("v_and_b32 v1, 63, v0"); e("v_readfirstlane_b32 s40, v2")
e("v_and_b32 v3, 15, v1"); e("v_lshrrev_b32 v4, 4, v1")
e("v_mul_u32_u24 v5, 384, v3"); e("v_lshrrev_b32 v6, 1, v3"); e("v_xor_b32 v6, v6, v4")
e("v_lshl_add_u32 v%d, v6, 4, v5" % KA); e("v_xor_b32 v6, 4, v6"); e("v_lshl_add_u32 v%d, v6, 4, v5" % (KA+1))
e("v_mul_u32_u24 v5, 24, v2"); e("v_lshrrev_b32 v6, 3, v1"); e("v_add_u32 v5, v5, v6"); e("v_mul_u32_u24 v5, 384, v5")
e("v_lshlrev_b32 v6, 1, v4"); e("v_and_b32 v7, 7, v1"); e("v_xor_b32 v6, v6, v7"); e("v_lshl_add_u32 v%d, v6, 4, v5" % DV)
e("s_mul_i32 s%d, s40, 3072" % sW); e("s_lshl_b32 s%d, s40, 2" % sWv); e("s_lshl_b32 s%d, s40, 11" % sW2)
if OPT['prio']:
    e("s_cmp_ge_u32 s40, 4"); e("s_cbranch_scc0 L_np"); e("s_setprio 1"); lab("L_np")
lane_consts(); lane_consts2()
e("s_waitcnt lgkmcnt(0)")
for (d, src) in ((SQ, 4), (SK, 6), (SV, 36), (SO, 38)):
    e("s_mov_b32 s%d, s%d" % (d, src)); e("s_and_b32 s%d, s%d, 0xffff" % (d+1, src+1))
    e("s_mov_b32 s%d, %d" % (d+2, NB)); e("s_mov_b32 s%d, 0x00020000" % (d+3))
e("s_mov_b32 s%d, 0x%x" % (sC, f2u(C))); e("s_mov_b32 s%d, 0x%x" % (sC2, f2u(2048.0))); e("s_mov_b32 s%d, 0x%x" % (sC2+1, f2u(C))); e("s_mov_b32 s%d, 0x%x" % (sTh, f2u(OPT['T'])))
e("s_mov_b32 s%d, s2" % sHd); e("s_mov_b32 s%d, 0" % sIt); e("s_mov_b32 s%d, 0x%x" % (sO, OOB))
next_head()
D1 = [('O', 1, 3), ('O', 1, 4), ('O', 1, 5)] + [('O', 2, k) for k in range(6)]
EV1 = {0: [('T', 1)], 1: [('T', 2)], 2: [('T', 3)], 4: [('T', 4)], 8: [('T', 5)], 9: [('T', 6)], 12: [('T', 7)], 16: [('T', 8)], 17: [('T', 9)], 20: [('T', 10)]}
for i, uu in enumerate({0: (5, 6, 7, 10, 11, 13, 14, 15, 18), 1: (3, 5, 6, 7, 10, 11, 13, 14, 15)}[OPT['sched'] % 2]):
    EV1.setdefault(uu, []).append(D1[(3+i) % 9])
EV2 = {0: [('T', 11)], 2: [('Q', 8)], 4: [('Q', 9)], 6: [('T', 12)]}
for i, c in enumerate((0, 2, 4, 1, 3, 5, 6, 7)): EV2.setdefault(12 + 2*i, []).append(('Q', c))
for i, pp in enumerate((14, 15, 17, 19, 21, 22)): EV2.setdefault(pp, []).append(('O', 0, i))
for i in range(8): EV2.setdefault(OPT['qd0'] + i, []).append(('Q', NSTG + i))
for i in range(3): EV2.setdefault(31 + 2*i, []).append(('O', 1, i))
if OPT['ns']:
    EV1 = {0: [('T', 2)], 1: [('T', 3)], 2: [('T', 4)], 3: [('T', 5)], 4: [('T', 6)], 8: [('T', 7)], 12: [('T', 8)], 16: [('T', 9)], 20: [('T', 10)]}
    for i, uu in enumerate({0: (5, 6, 7, 9, 10, 11, 13, 14, 15), 1: (6, 9, 10, 11, 13, 14, 15, 17, 18), 2: (9, 10, 11, 13, 14, 15, 17, 18, 19)}[OPT['sched'] % 3]):
        EV1.setdefault(uu, []).append(D1[(3+i) % 9])
    EV2 = {0: [('T', 11)], 2: [('Q', 8)], 4: [('Q', 9)], 6: [('T', 12)], 12: [('T', 13)], 18: [('Q', 0)], 19: [('Q', 2)], 20: [('Q', 4)],
           24: [('Q', 1), ('Q', 3)], 25: [('Q', 10), ('Q', 11)], 26: [('Q', 12), ('Q', 13)], 27: [('Q', 14), ('Q', 15)], 28: [('Q', 16), ('Q', 17)], 29: [('Q', 5)], 30: [('Q', 6), ('Q', 7)]}
    for i, pp in enumerate((14, 15, 16, 17, 21, 22)): EV2.setdefault(pp, []).append(('O', 0, i))
    for i in range(3): EV2.setdefault(31 + 2*i, []).append(('O', 1, i))
if OPT['sched'] >= 3:
    EV1 = {0: [('T', 2)], 2: [('T', 3)], 4: [('T', 4)], 8: [('T', 5)], 12: [('T', 6)], 16: [('T', 7)], 18: [('T', 8)], 20: [('T', 9)], 22: [('T', 10)]}
    for i, uu in enumerate((5, 6, 7, 9, 10, 11, 13, 14, 15)): EV1.setdefault(uu, []).append(D1[(3+i) % 9])
    EV2 = {0: [('T', 11)], 3: [('Q', 8)], 4: [('Q', 9)], 6: [('T', 12)], 12: [('T', 13)], 18: [('Q', 0)], 19: [('Q', 2)], 20: [('Q', 4)]}
    QP = {3: (24, 25, 25, 26, 27, 27, 28, 29, 30, 30, 31, 31, 32), 4: (24, 25, 26, 27, 28, 29, 30, 30, 31, 31, 32, 32, 33), 5: (24, 24, 25, 25, 26, 26, 27, 27, 28, 28, 29, 30, 30)}[OPT['sched']]
    for pp, c in zip(QP, (1, 3, 10, 11, 5, 12, 13, 14, 15, 16, 17, 6, 7)): EV2.setdefault(pp, []).append(('Q', c))
    for i, pp in enumerate((14, 15, 16, 21, 22, 23)): EV2.setdefault(pp, []).append(('O', 0, i))
    for i, pp in enumerate((33, 34, 35)): EV2.setdefault(pp, []).append(('O', 1, i))
if OPT['vmap']:
    EV2 = {0: [('T', 11)], 3: [('Q', 8)], 4: [('Q', 9)], 6: [('T', 12)], 12: [('Q', 0)], 13: [('Q', 2)], 17: [('Q', 4)], 18: [('Q', 1)], 19: [('Q', 3)], 20: [('Q', 5)],
           24: [('Q', 6), ('Q', 7)], 30: [('T', 13)]}
    for i, pp in enumerate(((25, 25, 26, 26, 27, 27, 28, 28), (25, 26, 26, 27, 28, 28, 29, 29), (25, 26, 27, 27, 28, 29, 30, 31), (25, 26, 26, 27, 28, 28, 29, 29))[OPT['dq']]): EV2.setdefault(pp, []).append(('Q', NSTG + i))
    for i, pp in enumerate((14, 15, 16, 21, 22, 23)): EV2.setdefault(pp, []).append(('O', 0, i))
    if OPT['dq'] == 2: EV2[30].remove(('T', 13)); EV2[32] = [('T', 13)]
    for i, pp in enumerate((33, 34, 35) if OPT['dq'] == 2 else (32, 33, 34)): EV2.setdefault(pp, []).append(('O', 1, i))
    if OPT['dq'] == 3:
        for pp in (17, 18, 19, 20, 21, 22, 23): EV2.pop(pp, None)
        EV2[14].append(('Q', 4)); EV2.update({17: [('O', 0, 3)], 18: [('Q', 1), ('O', 0, 4)], 19: [('Q', 3), ('O', 0, 5)], 20: [('Q', 5)]})
if OPT['tail']:
    for i, pp in enumerate((31, 31, 35)): EV2.setdefault(pp, []).append(('L', 1, 3+i))
if M3:
    EV1 = {0: [('T', 2)], 2: [('T', 3)], 4: [('T', 4)], 8: [('T', 5)], 12: [('T', 6)], 16: [('T', 7)], 18: [('T', 8)],
           19: [('Q', 0)], 20: [('Q', 2), ('Q', 4)], 21: [('Q', 1), ('Q', 3), ('Q', 5)]}
    for i, uu in enumerate((5, 6, 7, 9, 10, 11, 13, 14, 15)): EV1.setdefault(uu, []).append(D1[(3+i) % 9])
    EV2 = {2: [('Q', 6)], 3: [('Q', 7)], 4: [('Q', 8)], 5: [('Q', 9)], 6: [('T', 9)], 12: [('T', 10)], 18: [('T', 11)], 24: [('T', 12)], 30: [('T', 13)]}
    if OPT['qv'] == 1:
        EV1[21] = []; EV1[20] = [('Q', 2)]; EV1[21] = [('Q', 4)]
        EV2.update({2: [('Q', 1)], 3: [('Q', 3)], 4: [('Q', 5)], 5: [('Q', 6)], 8: [('Q', 7)], 9: [('Q', 8)], 10: [('Q', 9)]})
    for i in range(8): EV2.setdefault(25 + i//2, []).append(('Q', NSTG + i))
    for i, pp in enumerate((14, 15, 16, 20, 21, 22)): EV2.setdefault(pp, []).append(('O', 0, i))
    for i, pp in enumerate((32, 33, 34)): EV2.setdefault(pp, []).append(('O', 1, i))
def event(ev, ph1):
    global qid
    if ev[0] == 'T': tid[ev[1]] = dma(ev[1])
    elif ev[0] == 'Q': qid = qload(ev[1], QO1 if ph1 else QO)
    elif ev[0] == 'L': ostore(ev[1], ev[2], HOLD[ev[2]], 49, OO)
    elif ph1: ostore(ev[1], ev[2], (OD + 4*ev[2]) if ev[1] == 2 else (OD2 + 4*(ev[2]-3)), sOp, OO1)
    else: ostore(ev[1], ev[2], HOLD[ev[2]], sO, OO)
tline(sIt, 0)
dma(12)
for c in range(18): qload(c)
if OPT['ns']: dma(13)
e("s_waitcnt vmcnt(%d)" % ((3 if OPT['vmap'] else 21) if OPT['pro'] else 0))
e("s_barrier")
e("s_branch L_entry")
out.append(".p2align 6")
lab("L_head")
tline(sIt, 0)
stamp()
if OPT['stamp']: e("s_memrealtime s[96:97]")
e("s_mov_b64 s[%d:%d], 0" % (sMk, sMk+1))
vm = Cnt(); tid = {}
if OPT['pro'] and not M3: tid[1] = vm.issue()
if M3:
    tid[1] = vm.issue()
    for i in range(3): vm.issue()
lg = Cnt()
cp = OPT['compute']
LA1, LA2 = OPT['la1'], OPT['la2']
pend = {}
for n in range(LA1): pend[n] = lg.issue()
lg.done = lg.n
def spread(ops, slots, fn_slot, start=0):
    tot = sum(c for c, _ in ops); done = 0; oi = 0
    for k in range(slots):
        fn_slot(k)
        if k >= start:
            target = tot * (k - start + 1) / (slots - start)
            while oi < len(ops) and done + ops[oi][0]/2 <= target:
                emit_op(ops[oi]); done += ops[oi][0]; oi += 1
    while oi < len(ops): emit_op(ops[oi]); oi += 1
U0 = [(4, 'v_mov_b32 v%d, v%d' % (OD2+i, X+i)) for i in range(12)] + shuf(2, 0, T0, T1) + shuf(2, 1, T0, T1) + shuf(2, 2, T0, T1)
for u in range(24):
    p = u // 4
    if u % 4 == 0 and p > 0:
        if p+1 not in SP: wait_vm(tid[p+1])
        elif p in SP: wait_vm(tid[p])
        e("s_barrier"); stamp()
        if p in SP and cp:
            for n in range(24*p, 24*p+LA1): pend[n] = kread(n, POOL1[n % 4])
    ops = softmax(u-1) if (u > 0 and cp) else []
    if u == 0 and OPT['e0']: ops = U0
    evs = EV1.get(u, [])
    def slot(k):
        t, qt = divmod(k, 3); n = u*6 + t
        if k % 6 == 3 and k // 6 < len(evs): event(evs[k // 6], True)
        if not (cp and OPT['p1']): return
        if qt == 0: wait_lg(pend[n+1] if (OPT['w2'] and n % 2 == 0) else pend[n])
        kmfma(n, POOL1[n % 4], qt)
        if qt == 0 and n+LA1 < 144 and not ((n+LA1)//24 in SP and n//24 != (n+LA1)//24): pend[n+LA1] = kread(n+LA1, POOL1[(n+LA1) % 4])
    spread(ops, 18, slot, start=(0 if (u == 0 or (u % 4 == 0 and u//4 in SP)) else 6))
wait_vm(tid[7]); e("s_barrier"); stamp()
lab("L_p2")
lane_consts()
pend = {}
NP = len(POOL2)
NCH = 12 if OPT['oc'] else 19
if cp:
    for n in range(LA2): pend[n] = vread(n, POOL2[n % NP])
    o23 = softmax(23)
    for op in o23[:NCH]: emit_op(op)
LAC = 216; ONE = X
def lmf(j):
    return [(8, MF % (vr(LAC+4*qt, 4), vr(ONE, 4), vr(12*j+4*qt, 4), "0" if j == 0 else vr(LAC+4*qt, 4))) for qt in range(3)]
for pj in range(36):
    ps, j = divmod(pj, 12); p = 6 + pj // 6
    if pj % 6 == 0 and p > 6:
        if not (M3 and p >= 8): wait_vm(tid[p+1])
        e("s_barrier"); stamp()
    if M3 and pj % 6 == 5 and p >= 8:
        wait_vm(tid[p+1]); e("s_barrier")
    ops = []; fixed = {}
    def sumchk():
        e("v_add_f32 v%d, v%d, v%d" % (T0, LAC, LAC+4)); e("v_add_f32 v%d, v%d, v%d" % (T0, T0, LAC+8)); e("v_cmp_ngt_f32 vcc, s%d, v%d" % (sC2, T0))
        e("s_andn2_b64 s[46:47], vcc, s[%d:%d]" % (sMk, sMk+1)); e("s_cbranch_scc1 L_slow")
    def okchk():
        e("v_and_b32 v%d, 0x40004000, v%d" % (T0, T2)); e("v_cmp_ne_u32 vcc, 0, v%d" % T0)
        e("s_andn2_b64 s[46:47], vcc, s[%d:%d]" % (sMk, sMk+1)); e("s_cbranch_scc1 L_slow")
    if pj == 0 and cp: ops = o23[NCH:] + ([(12, okchk)] if OPT['oc'] == 1 else []) + ([(4, "v_mov_b32 v%d, 0x3f803f80" % (ONE+i)) for i in range(4)] if OPT['ones'] else [])
    if pj == 1 and not OPT['sh']: ops = [(4, lane_consts2)]
    if pj in (1, 2) and OPT['sh']:
        sv = out; out = []; lane_consts2(); lc = [(4, x.strip()) for x in out]; out = sv
        ops = lc[:13] if pj == 1 else lc[13:]
    if OPT['ones'] and cp:
        if OPT['oc'] == 2:
            for k, jj in {1: ((0, 0), (4, 1), (8, 2)), 2: ((0, 3), (4, 4), (8, 5)), 3: ((0, 6), (4, 7), (8, 8)), 4: ((0, 9), (6, 10)), 5: ((0, 11),)}.get(pj, ()): fixed[k] = lmf(jj)
            if pj == 5: fixed[9] = [(12, sumchk)]
        elif pj == 1: fixed[0] = lmf(0); fixed[6] = lmf(1)
        elif 1 < pj < 11: fixed[0] = lmf(pj)
        if pj == 10 and OPT['oc'] != 2: fixed[6] = lmf(11)
        if pj == (7 if OPT['oc'] == 2 else 11): fixed[2] = [(8, "v_rcp_f32 v%d, v%d" % (L+2*qt, LAC+4*qt)) for qt in range(3)]
    elif pj == 2:
        for qt in range(3): ops += [(4, s) for s in xlane("v_add_f32", L+2*qt, T0)] + [(8, "v_rcp_f32 v%d, v%d" % (L+2*qt, L+2*qt))]
    if j == 11:
        for k in range(6): fixed[6+k] = cvs(ps, k)
    if j == 0 and ps > 0:
        for k in range(10): fixed[k] = cvs(ps-1, 6+k)
        fixed[11] = shuf(ps-1, 0, T0, T1)[:4]
    if OPT['sh']:
        if j == 1 and ps > 0: ops = shuf(ps-1, 0, T0, T1)[4:]
        if 2 <= j <= 5 and ps > 0: ops = shuf(ps-1, 1 + (j-2)//2, T0, T1)[8*(j % 2):8*(j % 2)+8]
    else:
        if j == 1 and ps > 0: ops = shuf(ps-1, 0, T0, T1)[4:] + shuf(ps-1, 1, T0, T1)
        if j == 2 and ps > 0: ops = shuf(ps-1, 2, T0, T1)
    evs = EV2.get(pj, [])
    def slot(k):
        dt, qt = divmod(k, 3); n = pj*4 + dt
        if k % 6 == 3 and k // 6 < len(evs): event(evs[k // 6], False)
        if cp and OPT['p2']:
            if qt == 0: wait_lg(pend[n+1] if (OPT['w2'] and n % 2 == 0) else pend[n])
            vmfma(n, POOL2[n % NP], qt)
            if qt == 0 and n+LA2 < 144: pend[n+LA2] = vread(n+LA2, POOL2[(n+LA2) % NP])
        for op in fixed.get(k, []): emit_op(op)
    spread(ops, 12, slot, start=0)
    if j == 11 and ps < 2: stamp()
stamp()
lab("L_entry")
lg = Cnt()
if cp:
    for n in range(LA1): kread(n, POOL1[n])
e("s_mov_b32 s%d, s%d" % (sH, sHn)); e("s_mov_b32 s%d, s%d" % (sOp, sO))
for op in cv(2)[27:36]: emit_op(op)
for i in range(3): e("v_mov_b32 v%d, v%d" % (DK1+i, DK+i))
e("v_mov_b32 v%d, v%d" % (OO1, OO)); e("v_mov_b32 v%d, v%d" % (QO1, QO))
e("v_and_b32 v%d, 0x37, v%d" % (T0, LN)); e("v_lshl_add_u32 v%d, v%d, 4, s%d" % (T0, T0, sW)); e("v_bfe_u32 v%d, v%d, 3, 1" % (T1, LN))
e("v_lshl_add_u32 v%d, v%d, 10, v%d" % (T2, T1, T0)); e("v_mul_u32_u24 v%d, 0x%x, v%d" % (T1, ST, T1)); e("v_add_u32 v%d, v%d, v%d" % (T0, T0, T1))
e("v_add_u32 v%d, 0x%x, v%d" % (T2, (QS+2)*ST, T2)); e("v_add_u32 v%d, 0x%x, v%d" % (T0, QS*ST, T0))
e("s_sub_u32 s%d, s%d, s%d" % (sT, sW2, sW)); e("s_add_u32 s%d, s%d, %d" % (sT, sT, XL - (QS+2)*ST)); e("v_add_u32 v%d, s%d, v%d" % (T1, sT, T2))
for op in conv(2, 2, 1) + conv(2, 3, 1): emit_op(op)
e("s_mov_b32 s%d, s%d" % (sO, sHn if OPT['st'] else sO))
next_head()
e("s_cmp_eq_u32 s%d, 0x%x" % (sHn, OOB)); e("s_cselect_b32 s49, s%d, 0x%x" % (sO, OOB))
stamp()
wait_vm(qid)
stamp()
for c in range(NSTG):
    pr, hf = divmod(c, 2)
    a, im = (T0, pr*1024) if pr < 3 else ((T2, 0) if pr == 3 else (T1, 0))
    e("ds_read_b128 %s, v%d offset:%d" % (vr(Q+4*c, 4), a, im + 128*hf))
if not OPT['e0']:
    for i in range(6): e("v_pk_mov_b32 %s, %s, %s op_sel:[0,1]" % (vr(OD2+2*i, 2), vr(X+2*i, 2), vr(X+2*i, 2)))
for pr in range(4):
    A, B, FA, FB_ = 8*pr, 8*pr+4, Q+4*NSTG+8*pr, Q+4*NSTG+8*pr+4
    for i in range(4): e("v_pk_mov_b32 %s, %s, %s op_sel:[0,1]" % (vr(FA+2*i, 2), vr(A+2*i, 2), vr(A+2*i, 2)))
    for i in range(4): e("v_mov_b32_dpp v%d, v%d row_ror:8 row_mask:0xf bank_mask:0xc" % (FA+i, B+i))
    for i in range(4): e("v_mov_b32_dpp v%d, v%d row_ror:8 row_mask:0xf bank_mask:0x3" % (FB_+i, A+i))
for qt in range(0 if OPT['e0'] else 3):
    for op in shuf(2, qt, X, X+1): emit_op(op)
e("s_waitcnt lgkmcnt(0)")
e("s_barrier")
if OPT['stamp']:
    stamp()
    e("s_memrealtime s[%d:%d]" % (50+2*nst[0], 51+2*nst[0])); e("s_waitcnt lgkmcnt(0)")
    e("s_sub_u32 s%d, s%d, s96" % (50+2*nst[0], 50+2*nst[0])); e("s_add_u32 s%d, s%d, s50" % (50+2*nst[0], 50+2*nst[0])); nst[0] += 1
    e("s_cmp_lg_u32 s%d, 2" % sIt); e("s_cbranch_scc1 L_nost"); e("s_cmp_lg_u32 s2, %d" % (OPT['stamp']-1)); e("s_cbranch_scc1 L_nost")
    e("s_and_b32 s41, s40, 3"); e("s_cmp_lg_u32 s41, 0"); e("s_cbranch_scc1 L_nost")
    e("s_load_dwordx2 s[44:45], s[0:1], 32"); e("s_waitcnt lgkmcnt(0)"); e("s_mov_b32 s46, 256"); e("s_mov_b32 s47, 0x00020000")
    e("s_and_b32 s45, s45, 0xffff"); e("s_lshl_b32 s41, s40, 5"); e("v_mov_b32 v%d, s41" % T1)
    for i in range(nst[0]):
        e("s_sub_u32 s41, s%d, s50" % (50+2*i)); e("v_mov_b32 v%d, s41" % T0)
        e("buffer_store_dword v%d, v%d, s[44:47], 0 offen offset:%d" % (T0, T1, 4*i)); e("s_waitcnt vmcnt(0)")
    lab("L_nost")
e("s_add_u32 s%d, s%d, 1" % (sIt, sIt)); e("s_cmp_le_u32 s%d, %d" % (sIt, OPT['nheads'])); e("s_cbranch_scc1 L_head")
tline(sIt, 0)
for op in (U0[12 if OPT['tail'] else 0:] if OPT['e0'] else []): emit_op(op)
for ev in (D1[3:] if OPT['tail'] else D1): event(ev, True)
if OPT['tl']: e("s_waitcnt vmcnt(0)"); tline(sIt, 1)
lab("L_end")
e("s_endpgm")
if OPT['oc'] and cp: slowpath()
for s in (slow if cp else []): (out.append(s) if s.endswith(':') else e(s))
hdr = open('cdna_kernels/%s.s.ref' % NAME).read().split('\n')
hdr = [l for l in hdr if l.startswith(';') and '@launch' not in l]
txt = '\n'.join(hdr) + "\n; @launch grid=(256,1,1) block=(512,1,1) lds=163840\n"
txt += '.amdgcn_target "amdgcn-amd-amdhsa--gfx950"\n.text\n.globl %s_kernel\n.p2align 8\n.type %s_kernel,@function\n%s_kernel:\n' % (NAME, NAME, NAME)
txt += '\n'.join(out) + "\n"
txt += """.section .rodata,"a"
.p2align 6
.amdhsa_kernel %s_kernel
  .amdhsa_next_free_vgpr 256
  .amdhsa_next_free_sgpr 100
  .amdhsa_accum_offset 256
  .amdhsa_group_segment_fixed_size 0
  .amdhsa_kernarg_size 48
  .amdhsa_user_sgpr_count 2
  .amdhsa_user_sgpr_kernarg_segment_ptr 1
  .amdhsa_system_sgpr_workgroup_id_x 1
.end_amdhsa_kernel
""" % NAME
open(sys.argv[1], 'w').write(txt)
```
